```python
import torch

def _softmax(x, axis=-1):
    return torch.softmax(x, dim=axis)
def _gelu(x):
    return torch.nn.functional.gelu(x, approximate="tanh")
def _silu(x):
    return torch.nn.functional.silu(x)
def _sigmoid(x):
    return torch.sigmoid(x)
def _layernorm(x, axis=-1, eps=1e-5):
    m = x.mean(dim=axis, keepdim=True)
    v = x.var(dim=axis, keepdim=True, unbiased=False)
    return (x - m) / torch.sqrt(v + eps)
def _scatter_add(tgt, idx, src, axis=0):
    return tgt.clone().index_add_(axis, idx, src)
def _segment_sum(src, seg, n):
    out = torch.zeros((n,) + src.shape[1:], dtype=src.dtype)
    return out.index_add_(0, seg, src)
def _pad(x, pw):
    flat = tuple(v for pair in reversed(pw) for v in pair)
    return torch.nn.functional.pad(x, flat)

kernel_name = 'interleave_layers__mha_block__glu_gated_reglu__prompt'

def setup_inputs():

    _w = (lambda a: (lambda t: t.to(torch.bfloat16) if t.is_floating_point() else t)(torch.as_tensor(a)))
    def _A_setup():
        B, S, D, H = 1, 2048, 640, 32
        return {
            "x": _w((lambda *s: torch.randn(*s, dtype=torch.bfloat16) * 0.05)(B, S, D)),
            "wqkv": _w((lambda *s: torch.randn(*s, dtype=torch.bfloat16) * 0.05)(D, 3 * D)),
            "wo": _w((lambda *s: torch.randn(*s, dtype=torch.bfloat16) * 0.05)(D, D)),
        }
    _A_in = _A_setup()

    def _B_setup():
        B, S, D, F = 1, 2048, 640, 1536
        return {
            "x": _w((lambda *s: torch.randn(*s, dtype=torch.bfloat16) * 0.05)(B, S, D)),
            "W_gate": _w((lambda *s: torch.randn(*s, dtype=torch.bfloat16) * 0.8)(D, F) * (2.0 / D) ** 0.5),
            "W_up": _w((lambda *s: torch.randn(*s, dtype=torch.bfloat16) * 0.8)(D, F) * (2.0 / D) ** 0.5),
            "W_down": _w((lambda *s: torch.randn(*s, dtype=torch.bfloat16) * 0.8)(F, D) * (1.0 / F) ** 0.5),
        }
    _B_in = _B_setup()

    return {
        "A_x": _A_in["x"],
        "A_wqkv": _A_in["wqkv"],
        "A_wo": _A_in["wo"],
        "B_x": _B_in["x"],
        "B_W_gate": _B_in["W_gate"],
        "B_W_up": _B_in["W_up"],
        "B_W_down": _B_in["W_down"],
    }

def reference(A_x, A_wqkv, A_wo, B_x, B_W_gate, B_W_up, B_W_down):
    def _A_ref(x, wqkv, wo):
        B, S, D = x.shape
        H = 32
        Dh = D // H
        qkv = (lambda x, *d: x.permute(*d))((x @ wqkv).reshape(B, S, 3, H, Dh), 2, 0, 3, 1, 4)
        q, k, v = qkv[0], qkv[1], qkv[2]
        scores = torch.einsum("bhqd,bhkd->bhqk", q, k) * (Dh ** -0.5)
        p = _softmax(scores, axis=-1)
        o = torch.einsum("bhqk,bhkd->bhqd", p, v)
        return (lambda x, *d: x.permute(*d))(o, 0, 2, 1, 3).reshape(B, S, D) @ wo

    def _B_ref(x, W_gate, W_up, W_down):
        gate = torch.einsum("bsd,df->bsf", x, W_gate)
        up = torch.einsum("bsd,df->bsf", x, W_up)
        gate = gate * (lambda x, dt: x.to(dt))(gate > 0, gate.dtype)
        h = gate * up
        return torch.einsum("bsf,fd->bsd", h, W_down)

    x = A_x
    x = x + _A_ref(_layernorm(x, axis=-1), A_wqkv, A_wo)
    x = x + _B_ref(_layernorm(x, axis=-1), B_W_gate, B_W_up, B_W_down)
    x = x + _A_ref(_layernorm(x, axis=-1), A_wqkv, A_wo)
    x = x + _B_ref(_layernorm(x, axis=-1), B_W_gate, B_W_up, B_W_down)
    return x
```

```python
import struct, math, sys

S, D, H, DH, F = 2048, 640, 32, 20, 1536
WS_Q   = 0
WS_KV  = 0x400000
WS_O   = 0xA00000
WS_X1  = 0xE00000
WS_X2  = 0x1200000
WS_H   = 0x1600000
SZ_ACT = S * D * 2
SZ_H   = S * F * 2
QSCALE = (DH ** -0.5) * math.log2(math.e)

def f32(x): return struct.unpack("<I", struct.pack("<f", x))[0]

class K:
    def __init__(self, name):
        self.name = name; self.L = []; self.nl = 0
    def e(self, s):
        for ln in s.strip("\n").split("\n"):
            ln = ln.strip()
            if ln: self.L.append("    " + ln if not ln.endswith(":") else ln)
    def lab(self, base):
        self.nl += 1
        return f"L_{self.name}_{base}_{self.nl}"
    def text(self, nvgpr, nsgpr=100, accum=None):
        accum = accum or ((nvgpr + 3) // 4 * 4)
        return f""".text
.globl {self.name}
.p2align 8
.type {self.name},@function
{self.name}:
""" + "\n".join(self.L) + f"""
.section .rodata,"a"
.p2align 6
.amdhsa_kernel {self.name}
  .amdhsa_next_free_vgpr {nvgpr}
  .amdhsa_next_free_sgpr {nsgpr}
  .amdhsa_accum_offset {accum}
  .amdhsa_group_segment_fixed_size 0
  .amdhsa_kernarg_size 80
  .amdhsa_user_sgpr_count 2
  .amdhsa_user_sgpr_kernarg_segment_ptr 1
  .amdhsa_system_sgpr_workgroup_id_x 1
.end_amdhsa_kernel
"""
    def srd(self, d, ptr, off, size):
        if off:
            self.e(f"s_add_u32 s{d}, s{ptr}, {off:#x}\ns_addc_u32 s{d+1}, s{ptr+1}, 0")
        else:
            self.e(f"s_mov_b32 s{d}, s{ptr}\ns_mov_b32 s{d+1}, s{ptr+1}")
        self.e(f"s_mov_b32 s{d+2}, {size:#x}\ns_mov_b32 s{d+3}, 0x00020000")

def vr(b, n): return f"v[{b}:{b+n-1}]"

def gen_lngemm(name, kind, layer):
    k = K(name)
    qkv = kind == "qkv"
    NT = 4 if qkv else 6
    WB = 16384 if qkv else 24576
    SLOT = WB + 16384
    NSLOT = 5 if qkv else 4
    NST = 10
    NWD = 4 if qkv else 6
    ND = NWD + 4
    rowmajor = qkv and layer == 0
    vLane, vTmp, vTmp2, vTmp3 = 1, 2, 3, 4
    vWd = 8
    vXd = 14
    vWr = 18
    vXr = 22
    vSum, vSq, vCs = 26, 27, 28
    vOnes = 31
    XA, XB = 32, 36
    WA = 40; WBf = WA + 4 * NT
    ACC = WBf + 4 * NT
    ACC = (ACC + 3) // 4 * 4
    vSt = ACC + 16 * NT
    vE = vSt + 16
    NV = vE + 40
    k.e(f"""
    s_cmp_ge_u32 s2, 256
    s_cbranch_scc1 L_{name}_end
    s_load_dwordx4 s[20:23], s[0:1], 0      ; x, wqkv
    s_load_dwordx4 s[24:27], s[0:1], 32
    s_load_dwordx2 s[28:29], s[0:1], 72     ; ws
    s_and_b32 s30, s2, 7
    s_lshr_b32 s31, s2, 3
    v_and_b32 v{vLane}, 63, v0
    v_lshrrev_b32 v{vTmp}, 6, v0
    """)
    if qkv:
        k.e(f"""
        s_lshr_b32 s32, s30, 1
        s_lshl_b32 s32, s32, 2
        s_and_b32 s33, s31, 3
        s_add_u32 s32, s32, s33            ; rb
        s_and_b32 s33, s30, 1
        s_lshl_b32 s33, s33, 3
        s_lshr_b32 s34, s31, 2
        s_add_u32 s33, s33, s34            ; cb
        s_cmp_ge_u32 s33, 15
        s_cbranch_scc1 L_{name}_end
        """)
    else:
        k.e(f"""
        s_and_b32 s32, s30, 1
        s_lshl_b32 s32, s32, 3
        s_and_b32 s33, s31, 7
        s_add_u32 s32, s32, s33            ; rb
        s_lshr_b32 s33, s30, 1
        s_lshl_b32 s33, s33, 2
        s_lshr_b32 s34, s31, 3
        s_add_u32 s33, s33, s34            ; cb
        """)
    k.e(f"v_readfirstlane_b32 s35, v{vTmp}")
    if qkv:
        k.e(f"""
        v_lshrrev_b32 v{vTmp2}, 4, v{vLane}          ; kr
        v_lshl_add_u32 v{vTmp3}, v{vTmp}, 4, v{vTmp2}  ; 16w+kr
        v_mul_u32_u24 v{vTmp3}, 3840, v{vTmp3}
        v_lshlrev_b32 v{vTmp2}, 2, v{vTmp2}
        v_sub_u32 v{vTmp2}, v{vLane}, v{vTmp2}
        v_and_b32 v{vTmp2}, 15, v{vTmp2}
        v_lshl_add_u32 v{vWd}, v{vTmp2}, 4, v{vTmp3}
        """)
        for q in range(1, 4):
            k.e(f"v_add_u32 v{vWd+q}, {q*(4*3840-1024)}, v{vWd}")
    else:
        for q in range(3):
            k.e(f"""
            v_lshlrev_b32 v{vTmp2}, 4, v{vLane}
            v_add_u32 v{vTmp2}, {q*1024}, v{vTmp2}
            v_mul_u32_u24 v{vTmp3}, 0x556, v{vTmp2}
            v_lshrrev_b32 v{vTmp3}, 18, v{vTmp3}
            v_mul_u32_u24 v{vWd+q}, 192, v{vTmp3}
            v_sub_u32 v{vWd+q}, v{vTmp2}, v{vWd+q}
            v_lshl_add_u32 v{vTmp3}, v{vTmp}, 4, v{vTmp3}  ; 16w+row
            v_mul_u32_u24 v{vTmp3}, 3072, v{vTmp3}
            v_add_u32 v{vWd+q}, v{vWd+q}, v{vTmp3}
            """)
            if q: k.e(f"v_subrev_u32 v{vWd+q}, {q*1024}, v{vWd+q}")
    if rowmajor:
        for q in range(4):
            k.e(f"""
            v_lshrrev_b32 v{vTmp2}, 3, v{vLane}
            v_add_u32 v{vTmp2}, {8*q}, v{vTmp2}          ; row
            v_lshrrev_b32 v{vTmp3}, 1, v{vTmp2}
            v_xor_b32 v{vTmp3}, v{vTmp3}, v{vLane}
            v_and_b32 v{vTmp3}, 7, v{vTmp3}               ; (j%8)^f(row)
            v_mul_u32_u24 v{vTmp2}, 1280, v{vTmp2}
            v_lshl_add_u32 v{vXd+q}, v{vTmp3}, 4, v{vTmp2}
            """)
            if q: k.e(f"v_subrev_u32 v{vXd+q}, {q*1024}, v{vXd+q}")
    else:
        k.e(f"v_lshlrev_b32 v{vXd}, 4, v{vLane}")
    k.e("s_waitcnt lgkmcnt(0)")
    if rowmajor: k.srd(4, 20, 0, SZ_ACT)
    else: k.srd(4, 28, WS_X2 if qkv else WS_X1, SZ_ACT)
    if qkv:
        k.srd(8, 22, 0, D * 3 * D * 2)
    else:
        k.srd(8, 24, 0, D * F * 2)
        k.srd(12, 26, 0, D * F * 2)
    WSTEP = 64 * (3840 if qkv else 3072)
    k.e(f"s_mul_i32 s36, s33, {256 if qkv else 192}")
    k.e(f"s_lshl_b32 s42, s32, 2\ns_add_u32 s42, s42, s35        ; rb32")
    if rowmajor:
        k.e(f"s_mul_i32 s37, s42, {32*1280}")
        XSTEP = 128
    else:
        k.e(f"s_mul_i32 s37, s42, {80*512}")
        XSTEP = 4096
    k.e(f"s_mul_i32 s40, s35, {4096 if qkv else 3072}")
    k.e(f"s_lshl_b32 s41, s35, 12\ns_add_u32 s41, s41, {WB}")
    k.e(f"s_mov_b32 s38, 0\ns_mov_b32 s43, 0")

    def issue_dma():
        k.e(f"s_add_u32 s39, s38, s40\ns_mov_b32 m0, s39\ns_nop 0")
        if qkv:
            for q in range(4):
                k.e(f"buffer_load_dwordx4 v{vWd+q}, s[8:11], s36 offen offset:{q*1024} lds")
        else:
            for q in range(3):
                k.e(f"buffer_load_dwordx4 v{vWd+q}, s[8:11], s36 offen offset:{q*1024} lds")
            k.e(f"s_add_u32 s39, s39, 12288\ns_mov_b32 m0, s39\ns_nop 0")
            for q in range(3):
                k.e(f"buffer_load_dwordx4 v{vWd+q}, s[12:15], s36 offen offset:{q*1024} lds")
        k.e(f"s_add_u32 s39, s38, s41\ns_mov_b32 m0, s39\ns_nop 0")
        for q in range(4):
            k.e(f"buffer_load_dwordx4 v{vXd+(q if rowmajor else 0)}, s[4:7], s37 offen offset:{q*1024} lds")
        k.e(f"""
        s_add_u32 s36, s36, {WSTEP}
        s_add_u32 s37, s37, {XSTEP}
        s_add_u32 s43, s43, 1
        s_cmp_ge_u32 s43, {NST}
        s_cselect_b32 s37, 0x7f000000, s37
        s_cselect_b32 s36, 0x7f000000, s36
        s_add_u32 s38, s38, {SLOT}
        s_cmp_ge_u32 s38, {SLOT*NSLOT}
        s_cselect_b32 s38, 0, s38
        """)
    for s in range(NSLOT):
        issue_dma()
    if qkv:
        k.e(f"""
        v_lshrrev_b32 v{vTmp2}, 2, v{vLane}
        v_and_b32 v{vTmp2}, 3, v{vTmp2}                 ; row
        v_and_b32 v{vTmp3}, 3, v{vLane}
        v_lshlrev_b32 v{vTmp3}, 3, v{vTmp3}             ; 8*c4
        v_lshl_add_u32 v{vTmp3}, v{vTmp2}, 6, v{vTmp3}  ; +64row
        v_and_b32 v5, 16, v{vLane}
        v_lshl_add_u32 v{vTmp3}, v5, 1, v{vTmp3}        ; +32nh
        v_lshl_add_u32 v{vTmp3}, v{vTmp}, 6, v{vTmp3}
        v_lshlrev_b32 v{vTmp2}, 8, v{vTmp2}             ; row*256
        v_lshrrev_b32 v5, 5, v{vLane}
        v_lshl_add_u32 v{vTmp2}, v5, 11, v{vTmp2}       ; + h*2048
        """)
        for t in range(4):
            k.e(f"v_add_u32 v5, {64*t}, v{vTmp3}\nv_and_b32 v5, 255, v5\nv_add_u32 v{vWr+t}, v5, v{vTmp2}")
    else:
        k.e(f"""
        v_lshrrev_b32 v{vTmp2}, 2, v{vLane}
        v_and_b32 v{vTmp2}, 3, v{vTmp2}                 ; row
        v_lshrrev_b32 v5, 5, v{vLane}
        v_lshl_add_u32 v{vTmp2}, v5, 3, v{vTmp2}        ; 8h+row
        v_mul_u32_u24 v{vTmp2}, 192, v{vTmp2}
        v_and_b32 v{vTmp3}, 3, v{vLane}
        v_lshl_add_u32 v{vTmp2}, v{vTmp3}, 3, v{vTmp2}
        v_and_b32 v5, 16, v{vLane}
        v_lshl_add_u32 v{vWr}, v5, 1, v{vTmp2}
        """)
    if rowmajor:
        k.e(f"""
        v_and_b32 v{vTmp2}, 31, v{vLane}                ; r
        v_lshrrev_b32 v{vTmp3}, 1, v{vTmp2}
        v_and_b32 v{vTmp3}, 7, v{vTmp3}                 ; f
        v_lshrrev_b32 v5, 5, v{vLane}
        v_xor_b32 v{vTmp3}, v{vTmp3}, v5
        v_lshlrev_b32 v{vTmp3}, 4, v{vTmp3}
        v_lshl_add_u32 v{vTmp3}, v{vTmp2}, 7, v{vTmp3}
        v_add_u32 v{vXr}, s41, v{vTmp3}
        """)
        for s in range(1, 4):
            k.e(f"v_xor_b32 v{vXr+s}, {32*s}, v{vXr}")
    else:
        k.e(f"v_lshlrev_b32 v{vTmp3}, 4, v{vLane}\nv_add_u32 v{vXr}, s41, v{vTmp3}")
    k.e(f"v_mov_b32 v{vOnes}, 0x3f803f80\nv_mov_b32 v{vSum}, 0\nv_mov_b32 v{vSq}, 0\nv_mov_b32 v{vCs}, 0\nv_mov_b32 v{vCs+1}, 0")
    for i in range(16 * NT):
        k.e(f"v_mov_b32 v{ACC+i}, 0")

    NXR = 4 if rowmajor else 1
    NWR = 4 if qkv else 1
    def reads(s, X, W):
        k.e(f"ds_read_b128 {vr(X,4)}, v{vXr+(s if rowmajor else 0)}" + ("" if rowmajor else f" offset:{s*1024}"))
        for t in range(NT):
            for i in range(2):
                if qkv:
                    k.e(f"ds_read_b64_tr_b16 {vr(W+4*t+2*i,2)}, v{vWr+t} offset:{(4*s+i)*1024}")
                else:
                    k.e(f"ds_read_b64_tr_b16 {vr(W+4*t+2*i,2)}, v{vWr} offset:{(16*s+4*i)*192 + (t%3)*64 + (t//3)*12288}")
    NRD = 1 + 2 * NT
    def compute(X, W, vpath, s):
        dots = [f"v_dot2c_f32_bf16 v{vSum}, v{vOnes}, v{X+j}" for j in range(4)] + [f"v_dot2c_f32_bf16 v{vSq}, v{X+j}, v{X+j}" for j in range(4)]
        dots = [dots[i // 2 + 4 * (i % 2)] for i in range(8)]
        if qkv:
            dots += [f"v_dot2c_f32_bf16 v{vCs}, v{vOnes}, v{W+j}" for j in range(4)]
        per = (len(dots) + NT - 1) // NT
        for t in range(NT):
            a = vr(ACC + 16 * t, 16)
            if vpath: k.e(f"v_mfma_f32_32x32x16_bf16 {a}, {vr(X,4)}, {vr(W+4*t,4)}, {a}")
            else:     k.e(f"v_mfma_f32_32x32x16_bf16 {a}, {vr(W+4*t,4)}, {vr(X,4)}, {a}")
            for d in dots[t * per:(t + 1) * per]: k.e(d)
        if not qkv:
            l = k.lab("cs")
            k.e(f"s_cmp_lg_u32 s35, {s}\ns_cbranch_scc1 {l}")
            for j in range(4):
                for t in range(NT):
                    k.e(f"v_dot2c_f32_bf16 v{vE+t}, v{vOnes}, v{W+4*t+j}")
            k.e(f"{l}:")
    def adv_addr():
        k.e(f"""
        s_add_u32 s44, s44, {SLOT}
        s_cmp_ge_u32 s44, {SLOT*NSLOT}
        s_cselect_b32 s45, {-SLOT*(NSLOT-1) & 0xffffffff:#x}, s60
        s_cselect_b32 s44, 0, s44
        """)
        for t in range(NWR): k.e(f"v_add_u32 v{vWr+t}, s45, v{vWr+t}")
        for s in range(NXR): k.e(f"v_add_u32 v{vXr+s}, s45, v{vXr+s}")

    def store_addr_qk(isq):
        TS = 1280 if isq else 2560
        HS = 64 * TS
        k.e(f"""
        v_lshrrev_b32 v5, 5, v{vLane}                ; h
        v_and_b32 v6, 31, v{vLane}                   ; r
        s_lshl_b32 s46, s47, 5                       ; 32*cbp
        s_mul_i32 s48, s42, {TS}
        """)
        for t in range(4):
            k.e(f"s_add_u32 s49, s35, {t}\ns_and_b32 s49, s49, 3\ns_lshl_b32 s49, s49, 3\ns_add_u32 s49, s49, s46")
            for j in range(4):
                d = vSt + 4 * t + j
                k.e(f"""
                v_add_u32 v{vTmp2}, s49, v5
                v_add_u32 v{vTmp2}, {2*j}, v{vTmp2}           ; Qd
                v_mul_u32_u24 v{vTmp3}, 205, v{vTmp2}
                v_lshrrev_b32 v{vTmp3}, 10, v{vTmp3}          ; head
                v_mul_u32_u24 v7, 5, v{vTmp3}
                v_sub_u32 v{vTmp2}, v{vTmp2}, v7              ; dq
                v_mul_u32_u24 v{d}, {HS}, v{vTmp3}
                v_lshrrev_b32 v7, 1, v{vTmp2}
                v_lshl_add_u32 v{d}, v7, 9, v{d}              ; + (dq>>1)*512
                v_and_b32 v7, 1, v{vTmp2}
                v_lshl_add_u32 v{d}, v7, 3, v{d}              ; + (dq&1)*8
                v_lshrrev_b32 v7, 2, v{vTmp2}                 ; dq==4
                v_sub_u32 v7, 4, v7
                v_lshlrev_b32 v7, v7, v6
                v_add3_u32 v{d}, v{d}, v7, s48
                """)
    def store_addr_v():
        k.e(f"""
        v_lshrrev_b32 v5, 5, v{vLane}                ; h
        v_and_b32 v6, 31, v{vLane}                   ; n
        s_lshl_b32 s46, s47, 7                       ; 128*cbp
        s_mul_i32 s48, s42, 2560
        s_add_u32 s48, s48, 1280
        v_mul_u32_u24 v5, 320, v5
        """)
        for t in range(4):
            d = vSt + t
            k.e(f"""
            s_add_u32 s49, s35, {t}
            s_and_b32 s49, s49, 3
            s_lshl_b32 s49, s49, 5
            s_add_u32 s49, s49, s46
            v_add_u32 v{vTmp2}, s49, v6                   ; n'
            v_mul_u32_u24 v{vTmp3}, 3277, v{vTmp2}
            v_lshrrev_b32 v{vTmp3}, 16, v{vTmp3}          ; head
            v_mul_u32_u24 v7, 20, v{vTmp3}
            v_sub_u32 v{vTmp2}, v{vTmp2}, v7              ; d
            v_mul_u32_u24 v{d}, {64*2560}, v{vTmp3}
            v_lshl_add_u32 v{d}, v{vTmp2}, 4, v{d}
            v_add3_u32 v{d}, v{d}, v5, s48
            """)

    def mainloop(vpath):
        loop = k.lab("loop")
        k.e(f"s_mov_b32 s44, 0\ns_mov_b32 s50, {NST}\ns_mov_b32 s60, {SLOT}")
        k.e(f"s_waitcnt vmcnt({ND*(NSLOT-1)})\ns_barrier")
        reads(0, XA, WA)
        k.e(f"{loop}:")
        reads(1, XB, WBf)
        k.e(f"s_waitcnt lgkmcnt({NRD})")
        compute(XA, WA, vpath, 0)
        reads(2, XA, WA)
        k.e(f"s_waitcnt lgkmcnt({NRD})")
        compute(XB, WBf, vpath, 1)
        reads(3, XB, WBf)
        k.e(f"s_waitcnt lgkmcnt({NRD})")
        compute(XA, WA, vpath, 2)
        k.e(f"s_waitcnt vmcnt({ND*(NSLOT-2)}) lgkmcnt(0)\ns_barrier")
        adv_addr()
        reads(0, XA, WA)
        issue_dma()
        compute(XB, WBf, vpath, 3)
        k.e(f"s_sub_u32 s50, s50, 1\ns_cmp_lg_u32 s50, 0\ns_cbranch_scc1 {loop}")
        k.e("s_waitcnt vmcnt(0) lgkmcnt(0)\ns_barrier")

    def stats_final(scale):
        a, b = vE + 32, vE + 33
        k.e(f"""
        v_mov_b32 v{vTmp2}, v{vSum}
        v_mov_b32 v{vTmp3}, v{vSq}
        s_nop 1
        v_permlane32_swap_b32 v{vSum}, v{vTmp2}
        v_permlane32_swap_b32 v{vSq}, v{vTmp3}
        s_nop 1
        v_add_f32 v{vSum}, v{vSum}, v{vTmp2}
        v_add_f32 v{vSq}, v{vSq}, v{vTmp3}
        v_mul_f32 v{vSum}, {f32(1.0/640):#x}, v{vSum}        ; mean
        v_mul_f32 v{vSq}, {f32(1.0/640):#x}, v{vSq}
        v_fma_f32 v{vSq}, -v{vSum}, v{vSum}, v{vSq}          ; var
        v_max_f32 v{vSq}, 0, v{vSq}
        v_add_f32 v{vSq}, {f32(1e-5):#x}, v{vSq}
        v_rsq_f32 v{a}, v{vSq}
        s_nop 0
        """)
        if scale != 1.0: k.e(f"v_mul_f32 v{a}, {f32(scale):#x}, v{a}")
        k.e(f"v_mul_f32 v{b}, v{a}, v{vSum}\nv_sub_f32 v{b}, 0, v{b}")

    if qkv:
        k.e(f"s_cmp_ge_u32 s33, 10\ns_cbranch_scc1 L_{name}_v")
        k.e(f"s_cmp_ge_u32 s33, 5\ns_cselect_b32 s47, 5, 0\ns_sub_u32 s47, s33, s47       ; cbp\ns_cmp_ge_u32 s33, 5")
        lk = k.lab("isk"); lj = k.lab("join")
        k.e(f"s_cbranch_scc1 {lk}")
        k.srd(16, 28, WS_Q, 32 * 64 * 1280)
        store_addr_qk(True)
        k.e(f"s_mov_b32 s51, {f32(QSCALE):#x}\ns_branch {lj}\n{lk}:")
        k.srd(16, 28, WS_KV, 32 * 64 * 2560)
        store_addr_qk(False)
        k.e(f"s_mov_b32 s51, 1.0\n{lj}:")
        mainloop(False)
        stats_final(1.0)
        a, b = vE + 32, vE + 33
        k.e(f"v_mul_f32 v{a}, s51, v{a}\nv_mul_f32 v{b}, s51, v{b}")
        k.e(f"""
        v_mov_b32 v{vTmp2}, v{vCs}
        s_nop 1
        v_permlane32_swap_b32 v{vCs}, v{vTmp2}
        s_nop 1
        v_add_f32 v{vCs}, v{vCs}, v{vTmp2}
        v_and_b32 v{vTmp3}, 31, v{vLane}
        v_lshlrev_b32 v{vTmp3}, 2, v{vTmp3}
        s_lshl_b32 s46, s35, 7
        v_add_u32 v{vTmp3}, s46, v{vTmp3}
        ds_write_b32 v{vTmp3}, v{vCs}
        v_lshrrev_b32 v{vTmp3}, 5, v{vLane}
        v_lshlrev_b32 v{vTmp3}, 4, v{vTmp3}        ; h*16 bytes
        s_waitcnt lgkmcnt(0)
        s_barrier
        """)
        for t in range(4):
            k.e(f"s_add_u32 s49, s35, {t}\ns_and_b32 s49, s49, 3\ns_lshl_b32 s49, s49, 7\nv_add_u32 v{vTmp2}, s49, v{vTmp3}")
            cs = vE + 16 * (t % 2)
            for j in range(4):
                k.e(f"ds_read_b128 {vr(cs+4*j,4)}, v{vTmp2} offset:{32*j}")
            k.e("s_waitcnt lgkmcnt(0)")
            for j in range(4):
                for p in range(2):
                    c = cs + 4 * j + 2 * p; ac = ACC + 16 * t + 4 * j + 2 * p
                    k.e(f"v_pk_mul_f32 {vr(c,2)}, {vr(a,2)}, {vr(c,2)} op_sel:[1,0] op_sel_hi:[1,1]")
                    k.e(f"v_pk_fma_f32 {vr(ac,2)}, {vr(a,2)}, {vr(ac,2)}, {vr(c,2)} op_sel_hi:[0,1,1]")
                ac = ACC + 16 * t + 4 * j
                k.e(f"v_cvt_pk_bf16_f32 v{ac}, v{ac}, v{ac+1}\nv_cvt_pk_bf16_f32 v{ac+1}, v{ac+2}, v{ac+3}")
                k.e(f"buffer_store_dwordx2 {vr(ac,2)}, v{vSt+4*t+j}, s[16:19], 0 offen")
        k.e("s_endpgm")
        k.e(f"L_{name}_v:\ns_sub_u32 s47, s33, 10")
        k.srd(16, 28, WS_KV, 32 * 64 * 2560)
        store_addr_v()
        mainloop(True)
        stats_final(1.0)
        k.e(f"""
        v_mov_b32 v{vTmp2}, v{vCs}
        s_nop 1
        v_permlane32_swap_b32 v{vCs}, v{vTmp2}
        s_nop 1
        v_add_f32 v{vCs}, v{vCs}, v{vTmp2}
        v_and_b32 v{vTmp3}, 31, v{vLane}
        v_lshlrev_b32 v{vTmp3}, 2, v{vTmp3}
        s_lshl_b32 s46, s35, 7
        v_add_u32 v{vTmp2}, s46, v{vTmp3}
        ds_write_b32 v{vTmp2}, v{vCs}
        s_lshl_b32 s46, s35, 8
        s_add_u32 s46, s46, 1024
        v_add_u32 v{vTmp2}, s46, v{vTmp3}
        ds_write_b32 v{vTmp2}, v{a}
        ds_write_b32 v{vTmp2}, v{b} offset:128
        v_lshrrev_b32 v{vTmp2}, 5, v{vLane}
        v_lshlrev_b32 v{vTmp2}, 4, v{vTmp2}
        v_add_u32 v{vTmp2}, s46, v{vTmp2}
        s_waitcnt lgkmcnt(0)
        s_barrier
        """)
        for j in range(4):
            k.e(f"ds_read_b128 {vr(vE+4*j,4)}, v{vTmp2} offset:{32*j}")
            k.e(f"ds_read_b128 {vr(vE+16+4*j,4)}, v{vTmp2} offset:{128+32*j}")
        for t in range(4):
            k.e(f"s_add_u32 s49, s35, {t}\ns_and_b32 s49, s49, 3\ns_lshl_b32 s49, s49, 7\nv_add_u32 v5, s49, v{vTmp3}")
            k.e(f"ds_read_b32 v{vE+34+t}, v5")
        k.e("s_waitcnt lgkmcnt(0)")
        for t in range(4):
            cs = vE + 34 + t
            k.e(f"v_mov_b32 v{vTmp}, v{cs}")
            for m in range(2):
                for p in range(4):
                    ac = ACC + 16 * t + 8 * m + 2 * p
                    k.e(f"v_pk_mul_f32 {vr(ac,2)}, {vr(vE+8*m+2*p,2)}, {vr(ac,2)}")
                    k.e(f"v_pk_fma_f32 {vr(ac,2)}, {vr(vTmp,2)}, {vr(vE+16+8*m+2*p,2)}, {vr(ac,2)} op_sel_hi:[0,1,1]")
                ac = ACC + 16 * t + 8 * m
                for p in range(4):
                    k.e(f"v_cvt_pk_bf16_f32 v{ac+p}, v{ac+2*p}, v{ac+2*p+1}")
                k.e(f"buffer_store_dwordx4 {vr(ac,4)}, v{vSt+t}, s[16:19], 0 offen offset:{640*m}")
        k.e("s_endpgm")
    else:
        k.srd(16, 28, WS_H, SZ_H)
        for t in range(NT): k.e(f"v_mov_b32 v{vE+t}, 0")
        k.e(f"""
        v_lshlrev_b32 v{vSt}, 4, v{vLane}
        s_mul_i32 s48, s42, {192*512}
        s_mul_i32 s49, s33, {3*2048}
        s_add_u32 s48, s48, s49
        """)
        mainloop(False)
        stats_final(1.0)
        a, b = vE + 32, vE + 33
        k.e(f"""
        v_lshlrev_b32 v{vTmp3}, 2, v{vLane}        ; (h*32+n)*4
        s_mul_i32 s46, s35, 1536
        v_add_u32 v{vTmp3}, s46, v{vTmp3}
        """)
        for t in range(NT):
            k.e(f"ds_write_b32 v{vTmp3}, v{vE+t} offset:{256*t}")
        k.e(f"""
        s_waitcnt lgkmcnt(0)
        s_barrier
        """)
        k.e(f"""
        v_lshrrev_b32 v{vTmp2}, 5, v0
        v_lshlrev_b32 v{vTmp2}, 8, v{vTmp2}
        v_and_b32 v{vTmp3}, 31, v0
        v_lshl_add_u32 v{vTmp2}, v{vTmp3}, 2, v{vTmp2}
        """)
        for p in range(8):
            k.e(f"ds_read_b32 v{vE+p}, v{vTmp2} offset:{(p//2)*1536 + (p%2)*128}")
        k.e("s_waitcnt lgkmcnt(0)")
        for p in range(1, 8): k.e(f"v_add_f32 v{vE}, v{vE}, v{vE+p}")
        k.e(f"""
        v_lshlrev_b32 v{vTmp2}, 2, v0
        ds_write_b32 v{vTmp2}, v{vE} offset:8192
        v_lshrrev_b32 v{vTmp3}, 5, v{vLane}
        v_lshlrev_b32 v{vTmp3}, 4, v{vTmp3}
        s_waitcnt lgkmcnt(0)
        s_barrier
        """)
        for t in range(3):
            for j in range(4):
                k.e(f"ds_read_b128 {vr(vE+4*j,4)}, v{vTmp3} offset:{8192+128*t+32*j}")
                k.e(f"ds_read_b128 {vr(vE+16+4*j,4)}, v{vTmp3} offset:{8192+128*(t+3)+32*j}")
            k.e("s_waitcnt lgkmcnt(0)")
            g0 = ACC + 16 * t; u0 = ACC + 16 * (t + 3)
            for p in range(8):
                c = vE + 2 * p; ac = g0 + 2 * p
                k.e(f"v_pk_mul_f32 {vr(c,2)}, {vr(a,2)}, {vr(c,2)} op_sel:[1,0] op_sel_hi:[1,1]")
                k.e(f"v_pk_fma_f32 {vr(ac,2)}, {vr(a,2)}, {vr(ac,2)}, {vr(c,2)} op_sel_hi:[0,1,1]")
                c = vE + 16 + 2 * p; au = u0 + 2 * p
                k.e(f"v_pk_mul_f32 {vr(c,2)}, {vr(a,2)}, {vr(c,2)} op_sel:[1,0] op_sel_hi:[1,1]")
                k.e(f"v_pk_fma_f32 {vr(au,2)}, {vr(a,2)}, {vr(au,2)}, {vr(c,2)} op_sel_hi:[0,1,1]")
                k.e(f"v_max_f32 v{ac}, 0, v{ac}\nv_max_f32 v{ac+1}, 0, v{ac+1}")
                k.e(f"v_pk_mul_f32 {vr(ac,2)}, {vr(ac,2)}, {vr(au,2)}")
            for jj in range(2):
                for aa in range(2):
                    j = jj + 2 * aa
                    k.e(f"v_cvt_pk_bf16_f32 v{u0+4*jj+2*aa}, v{g0+4*j}, v{g0+4*j+1}")
                    k.e(f"v_cvt_pk_bf16_f32 v{u0+4*jj+2*aa+1}, v{g0+4*j+2}, v{g0+4*j+3}")
                k.e(f"buffer_store_dwordx4 {vr(u0+4*jj,4)}, v{vSt}, s[16:19], s48 offen offset:{2048*t%4096+1024*jj}" if t < 2 else
                    f"buffer_store_dwordx4 {vr(u0+4*jj,4)}, v{vSt}, s[16:19], s49 offen offset:{1024*jj}")
            if t == 1: k.e("s_add_u32 s49, s48, 4096")
        k.e("s_endpgm")
    k.e(f"L_{name}_end:\ns_endpgm")
    return k.text(NV), SLOT * NSLOT

def gen_attn(name):
    k = K(name)
    vLane, vT, vT2, vT3 = 1, 2, 3, 4
    vKa, vKt, vVa = 5, 6, 7
    Q1, Q2 = 8, 12
    CM = 16
    SA, SB = 32, 48
    P = 64
    O = 72
    KA, KB = 88, 96
    VA, VB = 104, 112
    vSt = 120
    NV = 128
    k.e(f"""
    s_cmp_ge_u32 s2, 256
    s_cbranch_scc1 L_{name}_end
    s_load_dwordx2 s[28:29], s[0:1], 72
    v_and_b32 v{vLane}, 63, v0
    v_lshrrev_b32 v{vT}, 6, v0
    s_and_b32 s30, s2, 7
    s_lshr_b32 s31, s2, 3
    s_lshl_b32 s30, s30, 2
    s_and_b32 s32, s31, 3
    s_add_u32 s30, s30, s32            ; head
    s_lshr_b32 s31, s31, 2             ; qblock (0..7)
    v_readfirstlane_b32 s35, v{vT}     ; wave
    v_lshlrev_b32 v{vT2}, 4, v{vLane}
    v_lshlrev_b32 v{vT3}, 3, v{vLane}
    s_lshl_b32 s33, s31, 3
    s_add_u32 s33, s33, s35            ; rb32
    s_waitcnt lgkmcnt(0)
    """)
    k.srd(4, 28, WS_Q, 32 * 64 * 1280)
    k.srd(8, 28, WS_KV, 32 * 64 * 2560)
    k.srd(12, 28, WS_O, SZ_ACT)
    k.e(f"""
    s_lshl_b32 s34, s30, 6
    s_add_u32 s34, s34, s33
    s_mul_i32 s34, s34, 1280
    v_mov_b32 v{Q2}, 0
    v_mov_b32 v{Q2+1}, 0
    v_mov_b32 v{Q2+2}, 0
    v_mov_b32 v{Q2+3}, 0
    buffer_load_dwordx4 {vr(Q1,4)}, v{vT2}, s[4:7], s34 offen
    s_mov_b32 exec_hi, 0
    buffer_load_dwordx2 {vr(Q2,2)}, v{vT3}, s[4:7], s34 offen offset:1024
    s_mov_b64 exec, -1
    s_mul_i32 s36, s30, {64*2560}
    s_lshl_b32 s37, s35, 10
    s_add_u32 s36, s36, s37
    """)
    for i in range(20):
        k.e(f"s_mov_b32 m0, s37\ns_nop 0\nbuffer_load_dwordx4 v{vT2}, s[8:11], s36 offen lds\ns_add_u32 s36, s36, 8192\ns_add_u32 s37, s37, 8192")
    k.e(f"""
    v_mov_b32 v{vKa}, v{vT2}                       ; lane*16
    v_and_b32 v{vT}, 31, v{vLane}
    v_lshlrev_b32 v{vKt}, 3, v{vT}
    v_add_u32 v{vKt}, 1024, v{vKt}
    v_lshrrev_b32 v{vT3}, 5, v{vLane}
    v_mul_u32_u24 v{vT3}, 320, v{vT3}
    v_lshl_add_u32 v{vVa}, v{vT}, 4, v{vT3}
    v_add_u32 v{vVa}, 1280, v{vVa}                 ; V: 1280 + h*320 + d*16
    s_mov_b32 s40, 0x000fffff
    s_mov_b32 s41, 0x000fffff
    """)
    for b in (KA, KB):
        k.e(f"v_mov_b32 v{b+6}, 0\nv_mov_b32 v{b+7}, 0")
    for b in (VA, VB):
        for i in range(8): k.e(f"v_mov_b32 v{b+i}, 0x3f803f80")
    for jj in range(3):
        k.e(f"""
        s_mul_i32 s42, s30, 5
        s_add_u32 s42, s42, {2*jj}
        v_lshrrev_b32 v{vT3}, 5, v{vLane}
        v_add_u32 v{vT3}, s42, v{vT3}                 ; cq
        v_lshrrev_b32 v{vSt+jj}, 3, v{vT3}
        v_lshlrev_b32 v{vSt+jj}, 11, v{vSt+jj}        ; (cq/8)*4*512
        v_and_b32 v{vT2}, 3, v{vT3}
        v_lshl_add_u32 v{vSt+jj}, v{vT2}, 9, v{vSt+jj}  ; + g*512
        v_and_b32 v{vT2}, 4, v{vT3}
        v_lshl_add_u32 v{vSt+jj}, v{vT2}, 1, v{vSt+jj}  ; + a*8
        v_lshl_add_u32 v{vSt+jj}, v{vT}, 4, v{vSt+jj}   ; + r*16
        """)
    k.e(f"s_mul_i32 s43, s33, {80*512}")
    for i in range(16): k.e(f"v_mov_b32 v{CM+i}, 0")
    k.e("s_mov_b32 s44, 0")
    def kread(b, off):
        k.e(f"ds_read_b128 {vr(b,4)}, v{vKa} offset:{off}\nds_read_b64 {vr(b+4,2)}, v{vKt} offset:{off}")
    def vread(b, off):
        k.e(f"s_mov_b64 exec, s[40:41]\nds_read_b128 {vr(b,4)}, v{vVa} offset:{off}\nds_read_b128 {vr(b+4,4)}, v{vVa} offset:{off+640}\ns_mov_b64 exec, -1")
    def qk(Sd, Kb):
        return [f"v_mfma_f32_32x32x16_bf16 {vr(Sd,16)}, {vr(Kb,4)}, {vr(Q1,4)}, {vr(CM,16)}",
                f"v_mfma_f32_32x32x16_bf16 {vr(Sd,16)}, {vr(Kb+4,4)}, {vr(Q2,4)}, {vr(Sd,16)}"]
    def setmax(Sd_max_reg):
        m = Sd_max_reg
        k.e(f"""
        v_mov_b32 v{vT2}, v{m}
        s_nop 1
        v_permlane32_swap_b32 v{m}, v{vT2}
        s_nop 1
        v_max_f32 v{m}, v{m}, v{vT2}
        v_sub_f32 v{m}, 0, v{m}
        """)
        for i in range(16): k.e(f"v_mov_b32 v{CM+i}, v{m}")
    k.e("s_waitcnt vmcnt(15)\ns_barrier")
    kread(KA, 0)
    k.e("s_waitcnt lgkmcnt(0)")
    for x in qk(SA, KA): k.e(x)
    k.e("s_nop 15")
    k.e(f"v_max3_f32 v{vT3}, v{SA}, v{SA+1}, v{SA+2}")
    for i in range(3, 15, 2): k.e(f"v_max3_f32 v{vT3}, v{vT3}, v{SA+i}, v{SA+i+1}")
    k.e(f"v_max_f32 v{vT3}, v{vT3}, v{SA+15}")
    setmax(vT3)
    main = k.lab("main"); loop = k.lab("loop")
    k.e(f"{main}:")
    for i in range(16): k.e(f"v_mov_b32 v{O+i}, 0")
    k.e(f"s_mov_b32 s45, 0")
    kread(KA, 0)
    kread(KB, 2560)
    vread(VA, 0)
    k.e("s_waitcnt lgkmcnt(4)")
    for x in qk(SA, KA): k.e(x)
    k.e("s_nop 15")
    k.e(f"{loop}:")
    UN = 16
    for t in range(UN):
        Sc, Sn = (SA, SB) if t % 2 == 0 else (SB, SA)
        Kn, Kn2 = (KB, KA) if t % 2 == 0 else (KA, KB)
        Vc, Vn = (VA, VB) if t % 2 == 0 else (VB, VA)
        if t == UN - 2:
            w = k.lab("w")
            k.e(f"""
            s_cmp_eq_u32 s45, 0
            s_cbranch_scc0 {w}a
            s_waitcnt vmcnt(10)
            {w}a:
            s_cmp_eq_u32 s45, 1
            s_cbranch_scc0 {w}b
            s_waitcnt vmcnt(5)
            {w}b:
            s_cmp_eq_u32 s45, 2
            s_cbranch_scc0 {w}c
            s_waitcnt vmcnt(0)
            {w}c:
            s_cmp_ge_u32 s45, 3
            s_cbranch_scc1 {w}d
            s_cmp_lg_u32 s44, 0
            s_cbranch_scc1 {w}d
            s_barrier
            {w}d:
            """)
        q = qk(Sn, Kn)
        k.e("s_waitcnt lgkmcnt(2)")
        k.e(q[0])
        kread(Kn2, ((t + 2) * 2560))
        for i in range(4): k.e(f"v_exp_f32 v{Sc+i}, v{Sc+i}")
        k.e(q[1])
        for i in range(4, 8): k.e(f"v_exp_f32 v{Sc+i}, v{Sc+i}")
        for i in range(4): k.e(f"v_cvt_pk_bf16_f32 v{P+i}, v{Sc+2*i}, v{Sc+2*i+1}")
        for i in range(8, 10): k.e(f"v_exp_f32 v{Sc+i}, v{Sc+i}")
        k.e("s_waitcnt lgkmcnt(2)")
        k.e(f"v_mfma_f32_32x32x16_bf16 {vr(O,16)}, {vr(Vc,4)}, {vr(P,4)}, {vr(O,16)}")
        vread(Vn, (t + 1) * 2560)
        for i in range(10, 16): k.e(f"v_exp_f32 v{Sc+i}, v{Sc+i}")
        k.e("s_nop 0")
        for i in range(4, 8): k.e(f"v_cvt_pk_bf16_f32 v{P+i}, v{Sc+2*i}, v{Sc+2*i+1}")
        k.e("s_nop 1")
        k.e(f"v_mfma_f32_32x32x16_bf16 {vr(O,16)}, {vr(Vc+4,4)}, {vr(P+4,4)}, {vr(O,16)}")
    k.e(f"""
    v_add_u32 v{vKa}, {UN*2560}, v{vKa}
    v_add_u32 v{vKt}, {UN*2560}, v{vKt}
    v_add_u32 v{vVa}, {UN*2560}, v{vVa}
    s_add_u32 s45, s45, 1
    s_cmp_lt_u32 s45, 4
    s_cbranch_scc1 {loop}
    s_waitcnt lgkmcnt(0)
    v_subrev_u32 v{vKa}, {64*2560}, v{vKa}
    v_subrev_u32 v{vKt}, {64*2560}, v{vKt}
    v_subrev_u32 v{vVa}, {64*2560}, v{vVa}
    s_nop 15
    v_mov_b32 v{vT2}, v{O+8}
    v_mov_b32 v{vT3}, v{O+8}
    s_nop 1
    v_permlane32_swap_b32 v{vT2}, v{vT3}
    s_nop 1
    s_mov_b32 s46, {f32(2.0**30):#x}
    v_cmp_gt_f32 vcc, s46, v{vT3}
    s_nop 1
    s_cmp_eq_u64 vcc, exec
    s_cbranch_scc1 L_{name}_fin
    s_cmp_lg_u32 s44, 0
    s_cbranch_scc1 L_{name}_fin
    """)
    k.e("s_mov_b32 s44, 1")
    for i in range(16): k.e(f"v_mov_b32 v{CM+i}, 0")
    k.e(f"v_mov_b32 v{vT3}, 0xff800000\ns_mov_b32 s45, 0")
    fl = k.lab("fb")
    k.e(f"{fl}:")
    kread(KA, 0)
    k.e("s_waitcnt lgkmcnt(0)")
    for x in qk(SA, KA): k.e(x)
    k.e("s_nop 15")
    for i in range(0, 16, 2): k.e(f"v_max3_f32 v{vT3}, v{vT3}, v{SA+i}, v{SA+i+1}")
    k.e(f"""
    v_add_u32 v{vKa}, 2560, v{vKa}
    v_add_u32 v{vKt}, 2560, v{vKt}
    s_add_u32 s45, s45, 1
    s_cmp_lt_u32 s45, 64
    s_cbranch_scc1 {fl}
    v_subrev_u32 v{vKa}, {64*2560}, v{vKa}
    v_subrev_u32 v{vKt}, {64*2560}, v{vKt}
    """)
    setmax(vT3)
    k.e(f"s_branch {main}")
    k.e(f"""
    L_{name}_fin:
    v_rcp_f32 v{vT3}, v{vT3}
    s_nop 0
    """)
    for i in range(12): k.e(f"v_mul_f32 v{O+i}, v{O+i}, v{vT3}")
    for jj in range(3):
        k.e(f"v_cvt_pk_bf16_f32 v{P+2*jj}, v{O+4*jj}, v{O+4*jj+1}\nv_cvt_pk_bf16_f32 v{P+2*jj+1}, v{O+4*jj+2}, v{O+4*jj+3}")
    k.e(f"""
    buffer_store_dwordx2 {vr(P,2)}, v{vSt}, s[12:15], s43 offen
    buffer_store_dwordx2 {vr(P+2,2)}, v{vSt+1}, s[12:15], s43 offen
    s_mov_b32 exec_hi, 0
    buffer_store_dwordx2 {vr(P+4,2)}, v{vSt+2}, s[12:15], s43 offen
    L_{name}_end:
    s_endpgm
    """)
    return k.text(NV), 163840

def gen_proj(name, kind, layer):
    k = K(name)
    wo = kind == "wo"
    KD = 640 if wo else 1536
    NST = KD // 128
    WB = 20480; SLOT = WB + 16384; NSLOT = 4
    ND = 9
    NCH = KD // 8
    res_rowmajor = wo and layer == 0
    out_rowmajor = (not wo) and layer == 1
    vLane, vT, vT2, vT3 = 1, 2, 3, 4
    vWd = 8
    vXd = 13
    vWr, vXr = 14, 15
    vRes = 16
    vSt = 26; vRa = 27
    XA, XB = 28, 36
    WA, WBf = 44, 64
    ACC = 84
    vE = 124
    NV = 144
    k.e(f"""
    s_cmp_ge_u32 s2, 256
    s_cbranch_scc1 L_{name}_end
    s_load_dwordx2 s[20:21], s[0:1], 0      ; x
    s_load_dwordx2 s[22:23], s[0:1], {16 if wo else 48}     ; W
    s_load_dwordx2 s[24:25], s[0:1], 56     ; out
    s_load_dwordx2 s[28:29], s[0:1], 72     ; ws
    s_and_b32 s30, s2, 7
    s_lshr_b32 s31, s2, 3
    v_and_b32 v{vLane}, 63, v0
    v_lshrrev_b32 v{vT}, 6, v0
    s_lshr_b32 s32, s30, 1
    s_lshl_b32 s32, s32, 3
    s_and_b32 s33, s31, 7
    s_add_u32 s32, s32, s33            ; rb64 (0..31)
    s_and_b32 s33, s30, 1
    s_lshl_b32 s33, s33, 2
    s_lshr_b32 s34, s31, 3
    s_add_u32 s33, s33, s34            ; cb (0..7)
    v_readfirstlane_b32 s35, v{vT}
    """)
    for q in range(5):
        k.e(f"""
        v_lshlrev_b32 v{vT2}, 4, v{vLane}
        v_add_u32 v{vT2}, {q*1024}, v{vT2}
        v_mul_u32_u24 v{vT3}, 0x199a, v{vT2}
        v_lshrrev_b32 v{vT3}, 20, v{vT3}
        v_mul_u32_u24 v{vWd+q}, 160, v{vT3}
        v_sub_u32 v{vWd+q}, v{vT2}, v{vWd+q}
        v_lshl_add_u32 v{vT3}, v{vT}, 5, v{vT3}        ; 32w+row
        v_mul_u32_u24 v{vT3}, 1280, v{vT3}
        v_add_u32 v{vWd+q}, v{vWd+q}, v{vT3}
        """)
        if q % 4: k.e(f"v_subrev_u32 v{vWd+q}, {(q%4)*1024}, v{vWd+q}")
    k.e(f"v_lshlrev_b32 v{vXd}, 4, v{vLane}")
    k.e("s_waitcnt lgkmcnt(0)")
    k.srd(4, 28, WS_O if wo else WS_H, SZ_ACT if wo else SZ_H)
    k.srd(8, 22, 0, KD * D * 2)
    if res_rowmajor: k.srd(12, 20, 0, SZ_ACT)
    else: k.srd(12, 28, WS_X2 if wo else WS_X1, SZ_ACT)
    if out_rowmajor: k.srd(16, 24, 0, SZ_ACT)
    else: k.srd(16, 28, WS_X1 if wo else WS_X2, SZ_ACT)
    k.e(f"""
    s_mul_i32 s36, s33, 160
    s_lshr_b32 s42, s35, 1              ; rh
    s_and_b32 s43, s35, 1               ; kh
    s_lshl_b32 s44, s32, 1
    s_add_u32 s44, s44, s42
    s_mul_i32 s37, s44, {NCH*512}
    s_lshl_b32 s45, s43, 12
    s_add_u32 s37, s37, s45
    s_mul_i32 s40, s35, 5120
    s_lshl_b32 s41, s35, 12
    s_add_u32 s41, s41, {WB}
    s_mov_b32 s38, 0
    s_mov_b32 s46, 0
    """)
    def issue_dma():
        k.e(f"s_add_u32 s39, s38, s40\ns_mov_b32 m0, s39\ns_nop 0")
        for q in range(4):
            k.e(f"buffer_load_dwordx4 v{vWd+q}, s[8:11], s36 offen offset:{q*1024} lds")
        k.e(f"s_add_u32 s39, s39, 4096\ns_mov_b32 m0, s39\ns_nop 0")
        k.e(f"buffer_load_dwordx4 v{vWd+4}, s[8:11], s36 offen lds")
        k.e(f"s_add_u32 s39, s38, s41\ns_mov_b32 m0, s39\ns_nop 0")
        for q in range(4):
            k.e(f"buffer_load_dwordx4 v{vXd}, s[4:7], s37 offen offset:{q*1024} lds")
        k.e(f"""
        s_add_u32 s36, s36, {128*1280}
        s_add_u32 s37, s37, 8192
        s_add_u32 s46, s46, 1
        s_cmp_ge_u32 s46, {NST}
        s_cselect_b32 s37, 0x7f000000, s37
        s_cselect_b32 s36, 0x7f000000, s36
        s_add_u32 s38, s38, {SLOT}
        s_cmp_ge_u32 s38, {SLOT*NSLOT}
        s_cselect_b32 s38, 0, s38
        """)
    k.e(f"""
    v_and_b32 v{vT2}, 15, v{vLane}                 ; r
    s_lshl_b32 s45, s43, 4
    v_add_u32 v{vT2}, s45, v{vT2}
    v_lshrrev_b32 v{vT3}, 4, v{vLane}              ; g
    """)
    def fr_addr(d):
        k.e(f"""
        v_lshrrev_b32 v5, 1, v{vT3}
        v_lshlrev_b32 v{d}, 9, v5
        v_and_b32 v5, 1, v{vT3}
        v_lshl_add_u32 v{d}, v5, 3, v{d}
        v_lshl_add_u32 v{d}, v{vT2}, 4, v{d}
        """)
    def rm_addr(d):
        k.e(f"v_mul_u32_u24 v{d}, 1280, v{vT2}\nv_lshl_add_u32 v{d}, v{vT3}, 3, v{d}")
    (rm_addr if res_rowmajor else fr_addr)(vRa)
    (rm_addr if out_rowmajor else fr_addr)(vSt)
    k.e(f"""
    s_mul_i32 s47, s44, {80*512}
    s_mul_i32 s48, s33, {10*512}
    s_add_u32 s47, s47, s48
    s_mul_i32 s48, s44, {32*1280}
    s_mul_i32 s49, s33, 160
    s_add_u32 s48, s48, s49
    """)
    for t in range(5):
        if res_rowmajor: k.e(f"buffer_load_dwordx2 {vr(vRes+2*t,2)}, v{vRa}, s[12:15], s48 offen offset:{32*t}")
        else:
            k.e(f"buffer_load_dwordx2 {vr(vRes+2*t,2)}, v{vRa}, s[12:15], s47 offen offset:{1024*t}" if t < 4 else
                f"s_add_u32 s49, s47, 4096\nbuffer_load_dwordx2 {vr(vRes+2*t,2)}, v{vRa}, s[12:15], s49 offen")
    for s in range(NSLOT): issue_dma()
    k.e(f"""
    v_lshrrev_b32 v5, 2, v{vLane}                  ; 4g+row
    s_lshl_b32 s45, s43, 5
    v_add_u32 v5, s45, v5
    v_mul_u32_u24 v5, 160, v5
    v_and_b32 v6, 3, v{vLane}
    v_lshl_add_u32 v{vWr}, v6, 3, v5
    v_and_b32 v5, 15, v{vLane}
    v_lshlrev_b32 v5, 4, v5
    v_lshl_add_u32 v5, v{vT3}, 9, v5               ; g*512 + r*16
    s_lshl_b32 s45, s42, 13
    s_lshl_b32 s49, s43, 11
    s_add_u32 s45, s45, s49
    s_add_u32 s45, s45, {WB}
    v_add_u32 v{vXr}, s45, v5
    """)
    for i in range(40): k.e(f"v_mov_b32 v{ACC+i}, 0")
    def reads(jj, X, W):
        for u in range(2):
            k.e(f"ds_read_b128 {vr(X+4*u,4)}, v{vXr} offset:{jj*4096 + u*256}")
        for t in range(5):
            for i in range(2):
                k.e(f"ds_read_b64_tr_b16 {vr(W+4*t+2*i,2)}, v{vWr} offset:{(64*jj+16*i)*160 + 32*t}")
    def compute(X, W):
        for t in range(5):
            for u in range(2):
                a = vr(ACC + 20 * u + 4 * t, 4)
                k.e(f"v_mfma_f32_16x16x32_bf16 {a}, {vr(W+4*t,4)}, {vr(X+4*u,4)}, {a}")
    loop = k.lab("loop")
    k.e(f"s_mov_b32 s50, 0\ns_mov_b32 s51, {NST}\ns_mov_b32 s60, {SLOT}")
    k.e(f"s_waitcnt vmcnt({ND*(NSLOT-1)})\ns_barrier")
    reads(0, XA, WA)
    k.e(f"{loop}:")
    reads(1, XB, WBf)
    k.e("s_waitcnt lgkmcnt(12)")
    compute(XA, WA)
    k.e(f"s_waitcnt vmcnt({ND*(NSLOT-2)}) lgkmcnt(0)\ns_barrier")
    k.e(f"""
    s_add_u32 s50, s50, {SLOT}
    s_cmp_ge_u32 s50, {SLOT*NSLOT}
    s_cselect_b32 s52, {-SLOT*(NSLOT-1) & 0xffffffff:#x}, s60
    s_cselect_b32 s50, 0, s50
    v_add_u32 v{vWr}, s52, v{vWr}
    v_add_u32 v{vXr}, s52, v{vXr}
    """)
    reads(0, XA, WA)
    issue_dma()
    compute(XB, WBf)
    k.e(f"s_sub_u32 s51, s51, 1\ns_cmp_lg_u32 s51, 0\ns_cbranch_scc1 {loop}")
    k.e("s_waitcnt vmcnt(0) lgkmcnt(0)\ns_barrier")
    k.e(f"""
    v_lshlrev_b32 v5, 4, v{vLane}
    s_mul_i32 s45, s35, 5120
    v_add_u32 v6, s45, v5
    s_xor_b32 s45, s35, 1
    s_mul_i32 s45, s45, 5120
    v_add_u32 v5, s45, v5
    s_nop 7
    """)
    l1 = k.lab("kh1"); lj = k.lab("j")
    k.e(f"s_cmp_eq_u32 s43, 0\ns_cbranch_scc0 {l1}")
    for t in range(5): k.e(f"ds_write_b128 v6, {vr(ACC+20+4*t,4)} offset:{1024*t}")
    k.e(f"s_branch {lj}\n{l1}:")
    for t in range(5): k.e(f"ds_write_b128 v6, {vr(ACC+4*t,4)} offset:{1024*t}")
    k.e("s_waitcnt lgkmcnt(0)")
    for i in range(20): k.e(f"v_mov_b32 v{ACC+i}, v{ACC+20+i}")
    k.e(f"{lj}:\ns_waitcnt lgkmcnt(0)\ns_barrier")
    for t in range(5): k.e(f"ds_read_b128 {vr(vE+4*t,4)}, v5 offset:{1024*t}")
    k.e("s_waitcnt lgkmcnt(0)")
    for t in range(5):
        a = ACC + 4 * t; e = vE + 4 * t; r = vRes + 2 * t
        k.e(f"""
        v_pk_add_f32 {vr(a,2)}, {vr(a,2)}, {vr(e,2)}
        v_pk_add_f32 {vr(a+2,2)}, {vr(a+2,2)}, {vr(e+2,2)}
        v_lshlrev_b32 v{e}, 16, v{r}
        v_and_b32 v{e+1}, 0xffff0000, v{r}
        v_lshlrev_b32 v{e+2}, 16, v{r+1}
        v_and_b32 v{e+3}, 0xffff0000, v{r+1}
        v_pk_add_f32 {vr(a,2)}, {vr(a,2)}, {vr(e,2)}
        v_pk_add_f32 {vr(a+2,2)}, {vr(a+2,2)}, {vr(e+2,2)}
        v_cvt_pk_bf16_f32 v{a}, v{a}, v{a+1}
        v_cvt_pk_bf16_f32 v{a+1}, v{a+2}, v{a+3}
        """)
        if out_rowmajor: k.e(f"buffer_store_dwordx2 {vr(a,2)}, v{vSt}, s[16:19], s48 offen offset:{32*t}")
        else:
            k.e(f"buffer_store_dwordx2 {vr(a,2)}, v{vSt}, s[16:19], s47 offen offset:{1024*t}" if t < 4 else
                f"s_add_u32 s49, s47, 4096\nbuffer_store_dwordx2 {vr(a,2)}, v{vSt}, s[16:19], s49 offen")
    k.e(f"L_{name}_end:\ns_endpgm")
    return k.text(NV), SLOT * NSLOT

def main(out):
    hdr = open("interleave_layers__mha_block__glu_gated_reglu__prompt.s.ref").read().split("; Override")[0]
    ks = {}
    ks["qkv0_kernel"] = (gen_lngemm("qkv0_kernel", "qkv", 0), 256)
    ks["qkv1_kernel"] = (gen_lngemm("qkv1_kernel", "qkv", 1), 256)
    ks["attn_kernel"] = (gen_attn("attn_kernel"), 512)
    ks["wo0_kernel"] = (gen_proj("wo0_kernel", "wo", 0), 256)
    ks["wo1_kernel"] = (gen_proj("wo1_kernel", "wo", 1), 256)
    ks["gu_kernel"] = (gen_lngemm("gu_kernel", "gu", 0), 256)
    ks["dn0_kernel"] = (gen_proj("dn0_kernel", "dn", 0), 256)
    ks["dn1_kernel"] = (gen_proj("dn1_kernel", "dn", 1), 256)
    order = ["qkv0_kernel", "attn_kernel", "wo0_kernel", "gu_kernel", "dn0_kernel", "qkv1_kernel", "attn_kernel", "wo1_kernel", "gu_kernel", "dn1_kernel"]
    txt = hdr
    for n in order:
        (t, lds), blk = ks[n]
        txt += f"; @launch kernel={n} grid=(256,1,1) block=({blk},1,1) lds={lds}\n"
    txt += '.amdgcn_target "amdgcn-amd-amdhsa--gfx950"\n'
    for n, ((t, lds), blk) in ks.items():
        txt += t
    open(out, "w").write(txt)

if __name__ == "__main__":
    main(sys.argv[1] if len(sys.argv) > 1 else "interleave_layers__mha_block__glu_gated_reglu__prompt.s")
```

```python
import struct, math, sys, os
XP = set(os.environ.get('XP', '').split(','))

S, D, H, DH, F = 2048, 640, 32, 20, 1536
WS_Q   = 0
WS_KV  = 0x400000
WS_O   = 0xA00000
WS_X1  = 0xE00000
WS_X2  = 0x1200000
WS_H   = 0x1600000
SZ_ACT = S * D * 2
SZ_H   = S * F * 2
QSCALE = (DH ** -0.5) * math.log2(math.e)

def f32(x): return struct.unpack("<I", struct.pack("<f", x))[0]

STAMPS = False
WS_DBG = 0x4000000
KIDX = {}
class K:
    def __init__(self, name):
        self.name = name; self.L = []; self.nl = 0; self.ns = 0
    def stamp(self, i, real=False):
        if not STAMPS: return
        self.e(f"s_waitcnt lgkmcnt(0)\n{'s_memrealtime' if real else 's_memtime'} s[{70+2*i}:{71+2*i}]\ns_waitcnt lgkmcnt(0)")
    def stamp_flush(self, wsptr=28):
        if not STAMPS: return
        kid = KIDX.setdefault(self.name, len(KIDX))
        self.e(f"""
        s_mov_b64 exec, -1
        s_add_u32 s92, s{wsptr}, {WS_DBG + kid * 0x100000:#x}
        s_addc_u32 s93, s{wsptr+1}, 0
        s_mov_b32 s94, 0x100000
        s_mov_b32 s95, 0x00020000
        v_lshrrev_b32 v200, 6, v0
        s_lshl_b32 s96, s2, 3
        v_add_u32 v200, s96, v200
        v_lshlrev_b32 v200, 6, v200
        """)
        for i in range(8):
            self.e(f"v_mov_b32 v202, s{70+2*i}\nv_mov_b32 v203, s{71+2*i}\nbuffer_store_dwordx2 v[202:203], v200, s[92:95], 0 offen offset:{8*i}\ns_nop 2")
    def e(self, s):
        for ln in s.strip("\n").split("\n"):
            ln = ln.strip()
            if ln: self.L.append("    " + ln if not ln.endswith(":") else ln)
    def lab(self, base):
        self.nl += 1
        return f"L_{self.name}_{base}_{self.nl}"
    def text(self, nvgpr, nsgpr=100, accum=None):
        if STAMPS: nvgpr = max(nvgpr, 208)
        accum = accum or ((nvgpr + 3) // 4 * 4)
        return f""".text
.globl {self.name}
.p2align 8
.type {self.name},@function
{self.name}:
""" + "\n".join(self.L) + f"""
.section .rodata,"a"
.p2align 6
.amdhsa_kernel {self.name}
  .amdhsa_next_free_vgpr {nvgpr}
  .amdhsa_next_free_sgpr {nsgpr}
  .amdhsa_accum_offset {accum}
  .amdhsa_group_segment_fixed_size 0
  .amdhsa_kernarg_size 80
  .amdhsa_user_sgpr_count 2
  .amdhsa_user_sgpr_kernarg_segment_ptr 1
  .amdhsa_system_sgpr_workgroup_id_x 1
.end_amdhsa_kernel
"""
    def srd(self, d, ptr, off, size):
        if off:
            self.e(f"s_add_u32 s{d}, s{ptr}, {off:#x}\ns_addc_u32 s{d+1}, s{ptr+1}, 0")
        else:
            self.e(f"s_mov_b32 s{d}, s{ptr}\ns_mov_b32 s{d+1}, s{ptr+1}")
        self.e(f"s_mov_b32 s{d+2}, {size:#x}\ns_mov_b32 s{d+3}, 0x00020000")

def fin(k):
    if STAMPS:
        k.stamp(5)
        k.e("s_waitcnt vmcnt(0)")
        k.stamp(6); k.stamp(7, True)
        k.stamp_flush()
    k.e("s_endpgm")

def vr(b, n): return f"v[{b}:{b+n-1}]"

def gen_lngemm(name, kind, layer):
    k = K(name)
    qkv = kind == "qkv"
    NT = 4 if qkv else 6
    WB = 16384 if qkv else 24576
    SLOT = WB + 16384
    NSLOT = 5 if qkv else 4
    NST = 10
    NWD = 4 if qkv else 6
    ND = NWD + 4
    rowmajor = qkv and layer == 0
    vLane, vTmp, vTmp2, vTmp3 = 1, 2, 3, 4
    vWd = 8
    vXd = 14
    vWr = 18
    vXr = 22
    vSum, vSq, vCs = 26, 27, 28
    vOnes = 31
    XA, XB = 32, 36
    WA = 40; WBf = WA + 4 * NT
    ACC = WBf + 4 * NT
    ACC = (ACC + 3) // 4 * 4
    vSt = ACC + 16 * NT
    vE = vSt + 16
    NV = vE + 40
    k.e(f"""
    s_cmp_ge_u32 s2, 256
    s_cbranch_scc1 L_{name}_end""")
    k.stamp(0, True); k.stamp(1)
    k.e(f"""
    s_load_dwordx4 s[20:23], s[0:1], 0      ; x, wqkv
    s_load_dwordx4 s[24:27], s[0:1], 32
    s_load_dwordx2 s[28:29], s[0:1], 72     ; ws
    s_and_b32 s30, s2, 7
    s_lshr_b32 s31, s2, 3
    v_and_b32 v{vLane}, 63, v0
    v_lshrrev_b32 v{vTmp}, 6, v0
    """)
    if qkv:
        k.e(f"""
        s_lshr_b32 s32, s30, 1
        s_lshl_b32 s32, s32, 2
        s_and_b32 s33, s31, 3
        s_add_u32 s32, s32, s33            ; rb
        s_and_b32 s33, s30, 1
        s_lshl_b32 s33, s33, 3
        s_lshr_b32 s34, s31, 2
        s_add_u32 s33, s33, s34            ; cb
        s_cmp_ge_u32 s33, 15
        s_cbranch_scc1 L_{name}_end
        """)
    else:
        k.e(f"""
        s_and_b32 s32, s30, 1
        s_lshl_b32 s32, s32, 3
        s_and_b32 s33, s31, 7
        s_add_u32 s32, s32, s33            ; rb
        s_lshr_b32 s33, s30, 1
        s_lshl_b32 s33, s33, 2
        s_lshr_b32 s34, s31, 3
        s_add_u32 s33, s33, s34            ; cb
        """)
    k.e(f"v_readfirstlane_b32 s35, v{vTmp}")
    if qkv:
        k.e(f"""
        v_lshrrev_b32 v{vTmp2}, 4, v{vLane}          ; kr
        v_lshl_add_u32 v{vTmp3}, v{vTmp}, 4, v{vTmp2}  ; 16w+kr
        v_mul_u32_u24 v{vTmp3}, 3840, v{vTmp3}
        v_lshlrev_b32 v{vTmp2}, 2, v{vTmp2}
        v_sub_u32 v{vTmp2}, v{vLane}, v{vTmp2}
        v_and_b32 v{vTmp2}, 15, v{vTmp2}
        v_lshl_add_u32 v{vWd}, v{vTmp2}, 4, v{vTmp3}
        """)
        for q in range(1, 4):
            k.e(f"v_add_u32 v{vWd+q}, {q*(4*3840-1024)}, v{vWd}")
    else:
        for q in range(3):
            k.e(f"""
            v_lshlrev_b32 v{vTmp2}, 4, v{vLane}
            v_add_u32 v{vTmp2}, {q*1024}, v{vTmp2}
            v_mul_u32_u24 v{vTmp3}, 0x556, v{vTmp2}
            v_lshrrev_b32 v{vTmp3}, 18, v{vTmp3}
            v_mul_u32_u24 v{vWd+q}, 192, v{vTmp3}
            v_sub_u32 v{vWd+q}, v{vTmp2}, v{vWd+q}
            v_lshl_add_u32 v{vTmp3}, v{vTmp}, 4, v{vTmp3}  ; 16w+row
            v_mul_u32_u24 v{vTmp3}, 3072, v{vTmp3}
            v_add_u32 v{vWd+q}, v{vWd+q}, v{vTmp3}
            """)
            if q: k.e(f"v_subrev_u32 v{vWd+q}, {q*1024}, v{vWd+q}")
    if rowmajor:
        for q in range(4):
            k.e(f"""
            v_lshrrev_b32 v{vTmp2}, 3, v{vLane}
            v_add_u32 v{vTmp2}, {8*q}, v{vTmp2}          ; row
            v_lshrrev_b32 v{vTmp3}, 1, v{vTmp2}
            v_xor_b32 v{vTmp3}, v{vTmp3}, v{vLane}
            v_and_b32 v{vTmp3}, 7, v{vTmp3}               ; (j%8)^f(row)
            v_mul_u32_u24 v{vTmp2}, 1280, v{vTmp2}
            v_lshl_add_u32 v{vXd+q}, v{vTmp3}, 4, v{vTmp2}
            """)
            if q: k.e(f"v_subrev_u32 v{vXd+q}, {q*1024}, v{vXd+q}")
    else:
        k.e(f"v_lshlrev_b32 v{vXd}, 4, v{vLane}")
    k.e("s_waitcnt lgkmcnt(0)")
    if rowmajor: k.srd(4, 20, 0, SZ_ACT)
    else: k.srd(4, 28, WS_X2 if qkv else WS_X1, SZ_ACT)
    if qkv:
        k.srd(8, 22, 0, D * 3 * D * 2)
    else:
        k.srd(8, 24, 0, D * F * 2)
        k.srd(12, 26, 0, D * F * 2)
    WSTEP = 64 * (3840 if qkv else 3072)
    k.e(f"s_mul_i32 s36, s33, {256 if qkv else 192}")
    k.e(f"s_lshl_b32 s42, s32, 2\ns_add_u32 s42, s42, s35        ; rb32")
    if rowmajor:
        k.e(f"s_mul_i32 s37, s42, {32*1280}")
        XSTEP = 128
    else:
        k.e(f"s_mul_i32 s37, s42, {80*512}")
        XSTEP = 4096
    k.e(f"s_mul_i32 s40, s35, {4096 if qkv else 3072}")
    k.e(f"s_lshl_b32 s41, s35, 12\ns_add_u32 s41, s41, {WB}")
    k.e(f"s_mov_b32 s38, 0\ns_mov_b32 s43, 0")

    def issue_dma():
        k.e(f"s_add_u32 s39, s38, s40\ns_mov_b32 m0, s39\ns_nop 0")
        if qkv:
            for q in range(4):
                k.e(f"buffer_load_dwordx4 v{vWd+q}, s[8:11], s36 offen offset:{q*1024} lds")
        else:
            for q in range(3):
                k.e(f"buffer_load_dwordx4 v{vWd+q}, s[8:11], s36 offen offset:{q*1024} lds")
            k.e(f"s_add_u32 s39, s39, 12288\ns_mov_b32 m0, s39\ns_nop 0")
            for q in range(3):
                k.e(f"buffer_load_dwordx4 v{vWd+q}, s[12:15], s36 offen offset:{q*1024} lds")
        k.e(f"s_add_u32 s39, s38, s41\ns_mov_b32 m0, s39\ns_nop 0")
        for q in range(4):
            k.e(f"buffer_load_dwordx4 v{vXd+(q if rowmajor else 0)}, s[4:7], s37 offen offset:{q*1024} lds")
        k.e(f"""
        s_add_u32 s36, s36, {WSTEP}
        s_add_u32 s37, s37, {XSTEP}
        s_add_u32 s43, s43, 1
        s_cmp_ge_u32 s43, {NST}
        s_cselect_b32 s37, 0x7f000000, s37
        s_cselect_b32 s36, 0x7f000000, s36
        s_add_u32 s38, s38, {SLOT}
        s_cmp_ge_u32 s38, {SLOT*NSLOT}
        s_cselect_b32 s38, 0, s38
        """)
    for s in range(NSLOT):
        issue_dma()
    if qkv:
        k.e(f"""
        v_lshrrev_b32 v{vTmp2}, 2, v{vLane}
        v_and_b32 v{vTmp2}, 3, v{vTmp2}                 ; row
        v_and_b32 v{vTmp3}, 3, v{vLane}
        v_lshlrev_b32 v{vTmp3}, 3, v{vTmp3}             ; 8*c4
        v_lshl_add_u32 v{vTmp3}, v{vTmp2}, 6, v{vTmp3}  ; +64row
        v_and_b32 v5, 16, v{vLane}
        v_lshl_add_u32 v{vTmp3}, v5, 1, v{vTmp3}        ; +32nh
        v_lshl_add_u32 v{vTmp3}, v{vTmp}, 6, v{vTmp3}
        v_lshlrev_b32 v{vTmp2}, 8, v{vTmp2}             ; row*256
        v_lshrrev_b32 v5, 5, v{vLane}
        v_lshl_add_u32 v{vTmp2}, v5, 11, v{vTmp2}       ; + h*2048
        """)
        for t in range(4):
            k.e(f"v_add_u32 v5, {64*t}, v{vTmp3}\nv_and_b32 v5, 255, v5\nv_add_u32 v{vWr+t}, v5, v{vTmp2}")
    else:
        k.e(f"""
        v_lshrrev_b32 v{vTmp2}, 2, v{vLane}
        v_and_b32 v{vTmp2}, 3, v{vTmp2}                 ; row
        v_lshrrev_b32 v5, 5, v{vLane}
        v_lshl_add_u32 v{vTmp2}, v5, 3, v{vTmp2}        ; 8h+row
        v_mul_u32_u24 v{vTmp2}, 192, v{vTmp2}
        v_and_b32 v{vTmp3}, 3, v{vLane}
        v_lshl_add_u32 v{vTmp2}, v{vTmp3}, 3, v{vTmp2}
        v_and_b32 v5, 16, v{vLane}
        v_lshl_add_u32 v{vWr}, v5, 1, v{vTmp2}
        """)
    if rowmajor:
        k.e(f"""
        v_and_b32 v{vTmp2}, 31, v{vLane}                ; r
        v_lshrrev_b32 v{vTmp3}, 1, v{vTmp2}
        v_and_b32 v{vTmp3}, 7, v{vTmp3}                 ; f
        v_lshrrev_b32 v5, 5, v{vLane}
        v_xor_b32 v{vTmp3}, v{vTmp3}, v5
        v_lshlrev_b32 v{vTmp3}, 4, v{vTmp3}
        v_lshl_add_u32 v{vTmp3}, v{vTmp2}, 7, v{vTmp3}
        v_add_u32 v{vXr}, s41, v{vTmp3}
        """)
        for s in range(1, 4):
            k.e(f"v_xor_b32 v{vXr+s}, {32*s}, v{vXr}")
    else:
        k.e(f"v_lshlrev_b32 v{vTmp3}, 4, v{vLane}\nv_add_u32 v{vXr}, s41, v{vTmp3}")
    k.e(f"v_mov_b32 v{vOnes}, 0x3f803f80\nv_mov_b32 v{vSum}, 0\nv_mov_b32 v{vSq}, 0\nv_mov_b32 v{vCs}, 0\nv_mov_b32 v{vCs+1}, 0")
    for i in range(16 * NT):
        k.e(f"v_mov_b32 v{ACC+i}, 0")

    NXR = 4 if rowmajor else 1
    NWR = 4 if qkv else 1
    def reads(s, X, W):
        if 'noreads' in XP: return
        k.e(f"ds_read_b128 {vr(X,4)}, v{vXr+(s if rowmajor else 0)}" + ("" if rowmajor else f" offset:{s*1024}"))
        for t in range(NT):
            for i in range(2):
                if qkv:
                    k.e(f"ds_read_b64_tr_b16 {vr(W+4*t+2*i,2)}, v{vWr+t} offset:{(4*s+i)*1024}")
                else:
                    k.e(f"ds_read_b64_tr_b16 {vr(W+4*t+2*i,2)}, v{vWr} offset:{(16*s+4*i)*192 + (t%3)*64 + (t//3)*12288}")
    NRD = 1 + 2 * NT
    def compute(X, W, vpath, s):
        dots = [f"v_dot2c_f32_bf16 v{vSum}, v{vOnes}, v{X+j}" for j in range(4)] + [f"v_dot2c_f32_bf16 v{vSq}, v{X+j}, v{X+j}" for j in range(4)]
        dots = [dots[i // 2 + 4 * (i % 2)] for i in range(8)]
        if qkv:
            dots += [f"v_dot2c_f32_bf16 v{vCs}, v{vOnes}, v{W+j}" for j in range(4)]
        if 'nodot' in XP: dots = []
        per = (len(dots) + NT - 1) // NT
        for t in range(NT):
            a = vr(ACC + 16 * t, 16)
            if vpath: k.e(f"v_mfma_f32_32x32x16_bf16 {a}, {vr(X,4)}, {vr(W+4*t,4)}, {a}")
            else:     k.e(f"v_mfma_f32_32x32x16_bf16 {a}, {vr(W+4*t,4)}, {vr(X,4)}, {a}")
            for d in dots[t * per:(t + 1) * per]: k.e(d)
        if not qkv:
            l = k.lab("cs")
            k.e(f"s_cmp_lg_u32 s35, {s}\ns_cbranch_scc1 {l}")
            for j in range(4):
                for t in range(NT):
                    k.e(f"v_dot2c_f32_bf16 v{vE+t}, v{vOnes}, v{W+4*t+j}")
            k.e(f"{l}:")
    def adv_addr():
        k.e(f"""
        s_add_u32 s44, s44, {SLOT}
        s_cmp_ge_u32 s44, {SLOT*NSLOT}
        s_cselect_b32 s45, {-SLOT*(NSLOT-1) & 0xffffffff:#x}, s60
        s_cselect_b32 s44, 0, s44
        """)
        for t in range(NWR): k.e(f"v_add_u32 v{vWr+t}, s45, v{vWr+t}")
        for s in range(NXR): k.e(f"v_add_u32 v{vXr+s}, s45, v{vXr+s}")

    def store_addr_qk(isq):
        TS = 1280 if isq else 2560
        HS = 64 * TS
        k.e(f"""
        v_lshrrev_b32 v5, 5, v{vLane}                ; h
        v_and_b32 v6, 31, v{vLane}                   ; r
        s_lshl_b32 s46, s47, 5                       ; 32*cbp
        s_mul_i32 s48, s42, {TS}
        """)
        for t in range(4):
            k.e(f"s_add_u32 s49, s35, {t}\ns_and_b32 s49, s49, 3\ns_lshl_b32 s49, s49, 3\ns_add_u32 s49, s49, s46")
            for j in range(4):
                d = vSt + 4 * t + j
                k.e(f"""
                v_add_u32 v{vTmp2}, s49, v5
                v_add_u32 v{vTmp2}, {2*j}, v{vTmp2}           ; Qd
                v_mul_u32_u24 v{vTmp3}, 205, v{vTmp2}
                v_lshrrev_b32 v{vTmp3}, 10, v{vTmp3}          ; head
                v_mul_u32_u24 v7, 5, v{vTmp3}
                v_sub_u32 v{vTmp2}, v{vTmp2}, v7              ; dq
                v_mul_u32_u24 v{d}, {HS}, v{vTmp3}
                v_lshrrev_b32 v7, 1, v{vTmp2}
                v_lshl_add_u32 v{d}, v7, 9, v{d}              ; + (dq>>1)*512
                v_and_b32 v7, 1, v{vTmp2}
                v_lshl_add_u32 v{d}, v7, 3, v{d}              ; + (dq&1)*8
                v_lshrrev_b32 v7, 2, v{vTmp2}                 ; dq==4
                v_sub_u32 v7, 4, v7
                v_lshlrev_b32 v7, v7, v6
                v_add3_u32 v{d}, v{d}, v7, s48
                """)
    def store_addr_v():
        k.e(f"""
        v_lshrrev_b32 v5, 5, v{vLane}                ; h
        v_and_b32 v6, 31, v{vLane}                   ; n
        s_lshl_b32 s46, s47, 7                       ; 128*cbp
        s_mul_i32 s48, s42, 2560
        s_add_u32 s48, s48, 1280
        v_mul_u32_u24 v5, 320, v5
        """)
        for t in range(4):
            d = vSt + t
            k.e(f"""
            s_add_u32 s49, s35, {t}
            s_and_b32 s49, s49, 3
            s_lshl_b32 s49, s49, 5
            s_add_u32 s49, s49, s46
            v_add_u32 v{vTmp2}, s49, v6                   ; n'
            v_mul_u32_u24 v{vTmp3}, 3277, v{vTmp2}
            v_lshrrev_b32 v{vTmp3}, 16, v{vTmp3}          ; head
            v_mul_u32_u24 v7, 20, v{vTmp3}
            v_sub_u32 v{vTmp2}, v{vTmp2}, v7              ; d
            v_mul_u32_u24 v{d}, {64*2560}, v{vTmp3}
            v_lshl_add_u32 v{d}, v{vTmp2}, 4, v{d}
            v_add3_u32 v{d}, v{d}, v5, s48
            """)

    def mainloop(vpath):
        loop = k.lab("loop")
        k.e(f"s_mov_b32 s44, 0\ns_mov_b32 s50, {NST}\ns_mov_b32 s60, {SLOT}")
        k.stamp(2); k.e(f"s_waitcnt vmcnt({ND*(NSLOT-1)})\ns_barrier"); k.stamp(3)
        reads(0, XA, WA)
        k.e(f"{loop}:")
        reads(1, XB, WBf)
        k.e(f"s_waitcnt lgkmcnt({NRD})")
        compute(XA, WA, vpath, 0)
        reads(2, XA, WA)
        k.e(f"s_waitcnt lgkmcnt({NRD})")
        compute(XB, WBf, vpath, 1)
        reads(3, XB, WBf)
        k.e(f"s_waitcnt lgkmcnt({NRD})")
        compute(XA, WA, vpath, 2)
        k.e(f"s_waitcnt vmcnt({ND*(NSLOT-2)}) lgkmcnt(0)\ns_barrier")
        adv_addr()
        reads(0, XA, WA)
        if 'nodma' not in XP: issue_dma()
        compute(XB, WBf, vpath, 3)
        k.e(f"s_sub_u32 s50, s50, 1\ns_cmp_lg_u32 s50, 0\ns_cbranch_scc1 {loop}")
        k.e("s_waitcnt vmcnt(0) lgkmcnt(0)\ns_barrier"); k.stamp(4)

    def stats_final(scale):
        a, b = vE + 32, vE + 33
        k.e(f"""
        v_mov_b32 v{vTmp2}, v{vSum}
        v_mov_b32 v{vTmp3}, v{vSq}
        s_nop 1
        v_permlane32_swap_b32 v{vSum}, v{vTmp2}
        v_permlane32_swap_b32 v{vSq}, v{vTmp3}
        s_nop 1
        v_add_f32 v{vSum}, v{vSum}, v{vTmp2}
        v_add_f32 v{vSq}, v{vSq}, v{vTmp3}
        v_mul_f32 v{vSum}, {f32(1.0/640):#x}, v{vSum}        ; mean
        v_mul_f32 v{vSq}, {f32(1.0/640):#x}, v{vSq}
        v_fma_f32 v{vSq}, -v{vSum}, v{vSum}, v{vSq}          ; var
        v_max_f32 v{vSq}, 0, v{vSq}
        v_add_f32 v{vSq}, {f32(1e-5):#x}, v{vSq}
        v_rsq_f32 v{a}, v{vSq}
        s_nop 0
        """)
        if scale != 1.0: k.e(f"v_mul_f32 v{a}, {f32(scale):#x}, v{a}")
        k.e(f"v_mul_f32 v{b}, v{a}, v{vSum}\nv_sub_f32 v{b}, 0, v{b}")

    if qkv:
        k.e(f"s_cmp_ge_u32 s33, 10\ns_cbranch_scc1 L_{name}_v")
        k.e(f"s_cmp_ge_u32 s33, 5\ns_cselect_b32 s47, 5, 0\ns_sub_u32 s47, s33, s47       ; cbp\ns_cmp_ge_u32 s33, 5")
        lk = k.lab("isk"); lj = k.lab("join")
        k.e(f"s_cbranch_scc1 {lk}")
        k.srd(16, 28, WS_Q, 32 * 64 * 1280)
        store_addr_qk(True)
        k.e(f"s_mov_b32 s51, {f32(QSCALE):#x}\ns_branch {lj}\n{lk}:")
        k.srd(16, 28, WS_KV, 32 * 64 * 2560)
        store_addr_qk(False)
        k.e(f"s_mov_b32 s51, 1.0\n{lj}:")
        mainloop(False)
        stats_final(1.0)
        a, b = vE + 32, vE + 33
        k.e(f"v_mul_f32 v{a}, s51, v{a}\nv_mul_f32 v{b}, s51, v{b}")
        k.e(f"""
        v_mov_b32 v{vTmp2}, v{vCs}
        s_nop 1
        v_permlane32_swap_b32 v{vCs}, v{vTmp2}
        s_nop 1
        v_add_f32 v{vCs}, v{vCs}, v{vTmp2}
        v_and_b32 v{vTmp3}, 31, v{vLane}
        v_lshlrev_b32 v{vTmp3}, 2, v{vTmp3}
        s_lshl_b32 s46, s35, 7
        v_add_u32 v{vTmp3}, s46, v{vTmp3}
        ds_write_b32 v{vTmp3}, v{vCs}
        v_lshrrev_b32 v{vTmp3}, 5, v{vLane}
        v_lshlrev_b32 v{vTmp3}, 4, v{vTmp3}        ; h*16 bytes
        s_waitcnt lgkmcnt(0)
        s_barrier
        """)
        for t in range(4):
            k.e(f"s_add_u32 s49, s35, {t}\ns_and_b32 s49, s49, 3\ns_lshl_b32 s49, s49, 7\nv_add_u32 v{vTmp2}, s49, v{vTmp3}")
            cs = vE + 16 * (t % 2)
            for j in range(4):
                k.e(f"ds_read_b128 {vr(cs+4*j,4)}, v{vTmp2} offset:{32*j}")
            k.e("s_waitcnt lgkmcnt(0)")
            for j in range(4):
                for p in range(2):
                    c = cs + 4 * j + 2 * p; ac = ACC + 16 * t + 4 * j + 2 * p
                    k.e(f"v_pk_mul_f32 {vr(c,2)}, {vr(a,2)}, {vr(c,2)} op_sel:[1,0] op_sel_hi:[1,1]")
                    k.e(f"v_pk_fma_f32 {vr(ac,2)}, {vr(a,2)}, {vr(ac,2)}, {vr(c,2)} op_sel_hi:[0,1,1]")
                ac = ACC + 16 * t + 4 * j
                k.e(f"v_cvt_pk_bf16_f32 v{ac}, v{ac}, v{ac+1}\nv_cvt_pk_bf16_f32 v{ac+1}, v{ac+2}, v{ac+3}")
                k.e(f"buffer_store_dwordx2 {vr(ac,2)}, v{vSt+4*t+j}, s[16:19], 0 offen")
        fin(k)
        k.e(f"L_{name}_v:\ns_sub_u32 s47, s33, 10")
        k.srd(16, 28, WS_KV, 32 * 64 * 2560)
        store_addr_v()
        mainloop(True)
        stats_final(1.0)
        k.e(f"""
        v_mov_b32 v{vTmp2}, v{vCs}
        s_nop 1
        v_permlane32_swap_b32 v{vCs}, v{vTmp2}
        s_nop 1
        v_add_f32 v{vCs}, v{vCs}, v{vTmp2}
        v_and_b32 v{vTmp3}, 31, v{vLane}
        v_lshlrev_b32 v{vTmp3}, 2, v{vTmp3}
        s_lshl_b32 s46, s35, 7
        v_add_u32 v{vTmp2}, s46, v{vTmp3}
        ds_write_b32 v{vTmp2}, v{vCs}
        s_lshl_b32 s46, s35, 8
        s_add_u32 s46, s46, 1024
        v_add_u32 v{vTmp2}, s46, v{vTmp3}
        ds_write_b32 v{vTmp2}, v{a}
        ds_write_b32 v{vTmp2}, v{b} offset:128
        v_lshrrev_b32 v{vTmp2}, 5, v{vLane}
        v_lshlrev_b32 v{vTmp2}, 4, v{vTmp2}
        v_add_u32 v{vTmp2}, s46, v{vTmp2}
        s_waitcnt lgkmcnt(0)
        s_barrier
        """)
        for j in range(4):
            k.e(f"ds_read_b128 {vr(vE+4*j,4)}, v{vTmp2} offset:{32*j}")
            k.e(f"ds_read_b128 {vr(vE+16+4*j,4)}, v{vTmp2} offset:{128+32*j}")
        for t in range(4):
            k.e(f"s_add_u32 s49, s35, {t}\ns_and_b32 s49, s49, 3\ns_lshl_b32 s49, s49, 7\nv_add_u32 v5, s49, v{vTmp3}")
            k.e(f"ds_read_b32 v{vE+34+t}, v5")
        k.e("s_waitcnt lgkmcnt(0)")
        for t in range(4):
            cs = vE + 34 + t
            k.e(f"v_mov_b32 v{vTmp}, v{cs}")
            for m in range(2):
                for p in range(4):
                    ac = ACC + 16 * t + 8 * m + 2 * p
                    k.e(f"v_pk_mul_f32 {vr(ac,2)}, {vr(vE+8*m+2*p,2)}, {vr(ac,2)}")
                    k.e(f"v_pk_fma_f32 {vr(ac,2)}, {vr(vTmp,2)}, {vr(vE+16+8*m+2*p,2)}, {vr(ac,2)} op_sel_hi:[0,1,1]")
                ac = ACC + 16 * t + 8 * m
                for p in range(4):
                    k.e(f"v_cvt_pk_bf16_f32 v{ac+p}, v{ac+2*p}, v{ac+2*p+1}")
                k.e(f"buffer_store_dwordx4 {vr(ac,4)}, v{vSt+t}, s[16:19], 0 offen offset:{640*m}")
        fin(k)
    else:
        k.srd(16, 28, WS_H, SZ_H)
        for t in range(NT): k.e(f"v_mov_b32 v{vE+t}, 0")
        k.e(f"""
        v_lshlrev_b32 v{vSt}, 4, v{vLane}
        s_mul_i32 s48, s42, {192*512}
        s_mul_i32 s49, s33, {3*2048}
        s_add_u32 s48, s48, s49
        """)
        mainloop(False)
        stats_final(1.0)
        a, b = vE + 32, vE + 33
        k.e(f"""
        v_lshlrev_b32 v{vTmp3}, 2, v{vLane}        ; (h*32+n)*4
        s_mul_i32 s46, s35, 1536
        v_add_u32 v{vTmp3}, s46, v{vTmp3}
        """)
        for t in range(NT):
            k.e(f"ds_write_b32 v{vTmp3}, v{vE+t} offset:{256*t}")
        k.e(f"""
        s_waitcnt lgkmcnt(0)
        s_barrier
        """)
        k.e(f"""
        v_lshrrev_b32 v{vTmp2}, 5, v0
        v_lshlrev_b32 v{vTmp2}, 8, v{vTmp2}
        v_and_b32 v{vTmp3}, 31, v0
        v_lshl_add_u32 v{vTmp2}, v{vTmp3}, 2, v{vTmp2}
        """)
        for p in range(8):
            k.e(f"ds_read_b32 v{vE+p}, v{vTmp2} offset:{(p//2)*1536 + (p%2)*128}")
        k.e("s_waitcnt lgkmcnt(0)")
        for p in range(1, 8): k.e(f"v_add_f32 v{vE}, v{vE}, v{vE+p}")
        k.e(f"""
        v_lshlrev_b32 v{vTmp2}, 2, v0
        ds_write_b32 v{vTmp2}, v{vE} offset:8192
        v_lshrrev_b32 v{vTmp3}, 5, v{vLane}
        v_lshlrev_b32 v{vTmp3}, 4, v{vTmp3}
        s_waitcnt lgkmcnt(0)
        s_barrier
        """)
        for t in range(3):
            for j in range(4):
                k.e(f"ds_read_b128 {vr(vE+4*j,4)}, v{vTmp3} offset:{8192+128*t+32*j}")
                k.e(f"ds_read_b128 {vr(vE+16+4*j,4)}, v{vTmp3} offset:{8192+128*(t+3)+32*j}")
            k.e("s_waitcnt lgkmcnt(0)")
            g0 = ACC + 16 * t; u0 = ACC + 16 * (t + 3)
            for p in range(8):
                c = vE + 2 * p; ac = g0 + 2 * p
                k.e(f"v_pk_mul_f32 {vr(c,2)}, {vr(a,2)}, {vr(c,2)} op_sel:[1,0] op_sel_hi:[1,1]")
                k.e(f"v_pk_fma_f32 {vr(ac,2)}, {vr(a,2)}, {vr(ac,2)}, {vr(c,2)} op_sel_hi:[0,1,1]")
                c = vE + 16 + 2 * p; au = u0 + 2 * p
                k.e(f"v_pk_mul_f32 {vr(c,2)}, {vr(a,2)}, {vr(c,2)} op_sel:[1,0] op_sel_hi:[1,1]")
                k.e(f"v_pk_fma_f32 {vr(au,2)}, {vr(a,2)}, {vr(au,2)}, {vr(c,2)} op_sel_hi:[0,1,1]")
                k.e(f"v_max_f32 v{ac}, 0, v{ac}\nv_max_f32 v{ac+1}, 0, v{ac+1}")
                k.e(f"v_pk_mul_f32 {vr(ac,2)}, {vr(ac,2)}, {vr(au,2)}")
            for jj in range(2):
                for aa in range(2):
                    j = jj + 2 * aa
                    k.e(f"v_cvt_pk_bf16_f32 v{u0+4*jj+2*aa}, v{g0+4*j}, v{g0+4*j+1}")
                    k.e(f"v_cvt_pk_bf16_f32 v{u0+4*jj+2*aa+1}, v{g0+4*j+2}, v{g0+4*j+3}")
                k.e(f"buffer_store_dwordx4 {vr(u0+4*jj,4)}, v{vSt}, s[16:19], s48 offen offset:{2048*t%4096+1024*jj}" if t < 2 else
                    f"buffer_store_dwordx4 {vr(u0+4*jj,4)}, v{vSt}, s[16:19], s49 offen offset:{1024*jj}")
            if t == 1: k.e("s_add_u32 s49, s48, 4096")
        fin(k)
    k.e(f"L_{name}_end:\ns_endpgm")
    return k.text(NV), SLOT * NSLOT

def gen_attn(name):
    k = K(name)
    vLane, vT, vT2, vT3 = 1, 2, 3, 4
    vKa, vKt, vVa = 5, 6, 7
    Q1, Q2 = 8, 12
    CM = 16
    SA, SB = 32, 48
    P = 64
    O = 72
    KA, KB = 88, 96
    VA, VB = 104, 112
    vSt = 120
    NV = 128
    k.e(f"""
    s_cmp_ge_u32 s2, 256
    s_cbranch_scc1 L_{name}_end""")
    k.stamp(0, True); k.stamp(1)
    k.e(f"""
    s_load_dwordx2 s[28:29], s[0:1], 72
    v_and_b32 v{vLane}, 63, v0
    v_lshrrev_b32 v{vT}, 6, v0
    s_and_b32 s30, s2, 7
    s_lshr_b32 s31, s2, 3
    s_lshl_b32 s30, s30, 2
    s_and_b32 s32, s31, 3
    s_add_u32 s30, s30, s32            ; head
    s_lshr_b32 s31, s31, 2             ; qblock (0..7)
    v_readfirstlane_b32 s35, v{vT}     ; wave
    v_lshlrev_b32 v{vT2}, 4, v{vLane}
    v_lshlrev_b32 v{vT3}, 3, v{vLane}
    s_lshl_b32 s33, s31, 3
    s_add_u32 s33, s33, s35            ; rb32
    s_waitcnt lgkmcnt(0)
    """)
    k.srd(4, 28, WS_Q, 32 * 64 * 1280)
    k.srd(8, 28, WS_KV, 32 * 64 * 2560)
    k.srd(12, 28, WS_O, SZ_ACT)
    k.e(f"""
    s_lshl_b32 s34, s30, 6
    s_add_u32 s34, s34, s33
    s_mul_i32 s34, s34, 1280
    v_mov_b32 v{Q2}, 0
    v_mov_b32 v{Q2+1}, 0
    v_mov_b32 v{Q2+2}, 0
    v_mov_b32 v{Q2+3}, 0
    buffer_load_dwordx4 {vr(Q1,4)}, v{vT2}, s[4:7], s34 offen
    s_mov_b32 exec_hi, 0
    buffer_load_dwordx2 {vr(Q2,2)}, v{vT3}, s[4:7], s34 offen offset:1024
    s_mov_b64 exec, -1
    s_mul_i32 s36, s30, {64*2560}
    s_lshl_b32 s37, s35, 10
    s_add_u32 s36, s36, s37
    """)
    for i in range(20):
        k.e(f"s_mov_b32 m0, s37\ns_nop 0\nbuffer_load_dwordx4 v{vT2}, s[8:11], s36 offen lds\ns_add_u32 s36, s36, 8192\ns_add_u32 s37, s37, 8192")
    k.e(f"""
    v_mov_b32 v{vKa}, v{vT2}                       ; lane*16
    v_and_b32 v{vT}, 31, v{vLane}
    v_lshlrev_b32 v{vKt}, 3, v{vT}
    v_add_u32 v{vKt}, 1024, v{vKt}
    v_lshrrev_b32 v{vT3}, 5, v{vLane}
    v_mul_u32_u24 v{vT3}, 320, v{vT3}
    v_lshl_add_u32 v{vVa}, v{vT}, 4, v{vT3}
    v_add_u32 v{vVa}, 1280, v{vVa}                 ; V: 1280 + h*320 + d*16
    s_mov_b32 s40, 0x000fffff
    s_mov_b32 s41, 0x000fffff
    """)
    for b in (KA, KB):
        k.e(f"v_mov_b32 v{b+6}, 0\nv_mov_b32 v{b+7}, 0")
    for b in (VA, VB):
        for i in range(8): k.e(f"v_mov_b32 v{b+i}, 0x3f803f80")
    for jj in range(3):
        k.e(f"""
        s_mul_i32 s42, s30, 5
        s_add_u32 s42, s42, {2*jj}
        v_lshrrev_b32 v{vT3}, 5, v{vLane}
        v_add_u32 v{vT3}, s42, v{vT3}                 ; cq
        v_lshrrev_b32 v{vSt+jj}, 3, v{vT3}
        v_lshlrev_b32 v{vSt+jj}, 11, v{vSt+jj}        ; (cq/8)*4*512
        v_and_b32 v{vT2}, 3, v{vT3}
        v_lshl_add_u32 v{vSt+jj}, v{vT2}, 9, v{vSt+jj}  ; + g*512
        v_and_b32 v{vT2}, 4, v{vT3}
        v_lshl_add_u32 v{vSt+jj}, v{vT2}, 1, v{vSt+jj}  ; + a*8
        v_lshl_add_u32 v{vSt+jj}, v{vT}, 4, v{vSt+jj}   ; + r*16
        """)
    k.e(f"s_mul_i32 s43, s33, {80*512}")
    for i in range(16): k.e(f"v_mov_b32 v{CM+i}, 0")
    k.e("s_mov_b32 s44, 0")
    def kread(b, off):
        k.e(f"ds_read_b128 {vr(b,4)}, v{vKa} offset:{off}\nds_read_b64 {vr(b+4,2)}, v{vKt} offset:{off}")
    def vread(b, off):
        k.e(f"s_mov_b64 exec, s[40:41]\nds_read_b128 {vr(b,4)}, v{vVa} offset:{off}\nds_read_b128 {vr(b+4,4)}, v{vVa} offset:{off+640}\ns_mov_b64 exec, -1")
    def qk(Sd, Kb):
        return [f"v_mfma_f32_32x32x16_bf16 {vr(Sd,16)}, {vr(Kb,4)}, {vr(Q1,4)}, {vr(CM,16)}",
                f"v_mfma_f32_32x32x16_bf16 {vr(Sd,16)}, {vr(Kb+4,4)}, {vr(Q2,4)}, {vr(Sd,16)}"]
    def setmax(Sd_max_reg):
        m = Sd_max_reg
        k.e(f"""
        v_mov_b32 v{vT2}, v{m}
        s_nop 1
        v_permlane32_swap_b32 v{m}, v{vT2}
        s_nop 1
        v_max_f32 v{m}, v{m}, v{vT2}
        v_sub_f32 v{m}, 0, v{m}
        """)
        for i in range(16): k.e(f"v_mov_b32 v{CM+i}, v{m}")
    k.stamp(2); k.e("s_waitcnt vmcnt(15)\ns_barrier"); k.stamp(3)
    kread(KA, 0)
    k.e("s_waitcnt lgkmcnt(0)")
    for x in qk(SA, KA): k.e(x)
    k.e("s_nop 15")
    k.e(f"v_max3_f32 v{vT3}, v{SA}, v{SA+1}, v{SA+2}")
    for i in range(3, 15, 2): k.e(f"v_max3_f32 v{vT3}, v{vT3}, v{SA+i}, v{SA+i+1}")
    k.e(f"v_max_f32 v{vT3}, v{vT3}, v{SA+15}")
    setmax(vT3)
    main = k.lab("main"); loop = k.lab("loop")
    k.e(f"{main}:")
    for i in range(16): k.e(f"v_mov_b32 v{O+i}, 0")
    k.e(f"s_mov_b32 s45, 0")
    kread(KA, 0)
    kread(KB, 2560)
    vread(VA, 0)
    k.e("s_waitcnt lgkmcnt(4)")
    for x in qk(SA, KA): k.e(x)
    k.e("s_nop 15")
    k.e(f"{loop}:")
    UN = 16
    for t in range(UN):
        Sc, Sn = (SA, SB) if t % 2 == 0 else (SB, SA)
        Kn, Kn2 = (KB, KA) if t % 2 == 0 else (KA, KB)
        Vc, Vn = (VA, VB) if t % 2 == 0 else (VB, VA)
        if t == UN - 2:
            w = k.lab("w")
            k.e(f"""
            s_cmp_eq_u32 s45, 0
            s_cbranch_scc0 {w}a
            s_waitcnt vmcnt(10)
            {w}a:
            s_cmp_eq_u32 s45, 1
            s_cbranch_scc0 {w}b
            s_waitcnt vmcnt(5)
            {w}b:
            s_cmp_eq_u32 s45, 2
            s_cbranch_scc0 {w}c
            s_waitcnt vmcnt(0)
            {w}c:
            s_cmp_ge_u32 s45, 3
            s_cbranch_scc1 {w}d
            s_cmp_lg_u32 s44, 0
            s_cbranch_scc1 {w}d
            s_barrier
            {w}d:
            """)
        q = qk(Sn, Kn)
        k.e("s_waitcnt lgkmcnt(2)")
        k.e(q[0])
        kread(Kn2, ((t + 2) * 2560))
        for i in range(4): k.e(f"v_exp_f32 v{Sc+i}, v{Sc+i}")
        k.e(q[1])
        for i in range(4, 8): k.e(f"v_exp_f32 v{Sc+i}, v{Sc+i}")
        for i in range(4): k.e(f"v_cvt_pk_bf16_f32 v{P+i}, v{Sc+2*i}, v{Sc+2*i+1}")
        for i in range(8, 10): k.e(f"v_exp_f32 v{Sc+i}, v{Sc+i}")
        k.e("s_waitcnt lgkmcnt(2)")
        k.e(f"v_mfma_f32_32x32x16_bf16 {vr(O,16)}, {vr(Vc,4)}, {vr(P,4)}, {vr(O,16)}")
        vread(Vn, (t + 1) * 2560)
        for i in range(10, 16): k.e(f"v_exp_f32 v{Sc+i}, v{Sc+i}")
        k.e("s_nop 0")
        for i in range(4, 8): k.e(f"v_cvt_pk_bf16_f32 v{P+i}, v{Sc+2*i}, v{Sc+2*i+1}")
        k.e("s_nop 1")
        k.e(f"v_mfma_f32_32x32x16_bf16 {vr(O,16)}, {vr(Vc+4,4)}, {vr(P+4,4)}, {vr(O,16)}")
    k.e(f"""
    v_add_u32 v{vKa}, {UN*2560}, v{vKa}
    v_add_u32 v{vKt}, {UN*2560}, v{vKt}
    v_add_u32 v{vVa}, {UN*2560}, v{vVa}
    s_add_u32 s45, s45, 1
    s_cmp_lt_u32 s45, 4
    s_cbranch_scc1 {loop}
    s_waitcnt lgkmcnt(0)
    v_subrev_u32 v{vKa}, {64*2560}, v{vKa}
    v_subrev_u32 v{vKt}, {64*2560}, v{vKt}
    v_subrev_u32 v{vVa}, {64*2560}, v{vVa}
    s_nop 15
    v_mov_b32 v{vT2}, v{O+8}
    v_mov_b32 v{vT3}, v{O+8}
    s_nop 1
    v_permlane32_swap_b32 v{vT2}, v{vT3}
    s_nop 1
    s_mov_b32 s46, {f32(2.0**30):#x}
    v_cmp_gt_f32 vcc, s46, v{vT3}
    s_nop 1
    s_cmp_eq_u64 vcc, exec
    s_cbranch_scc1 L_{name}_fin
    s_cmp_lg_u32 s44, 0
    s_cbranch_scc1 L_{name}_fin
    """)
    k.e("s_mov_b32 s44, 1")
    for i in range(16): k.e(f"v_mov_b32 v{CM+i}, 0")
    k.e(f"v_mov_b32 v{vT3}, 0xff800000\ns_mov_b32 s45, 0")
    fl = k.lab("fb")
    k.e(f"{fl}:")
    kread(KA, 0)
    k.e("s_waitcnt lgkmcnt(0)")
    for x in qk(SA, KA): k.e(x)
    k.e("s_nop 15")
    for i in range(0, 16, 2): k.e(f"v_max3_f32 v{vT3}, v{vT3}, v{SA+i}, v{SA+i+1}")
    k.e(f"""
    v_add_u32 v{vKa}, 2560, v{vKa}
    v_add_u32 v{vKt}, 2560, v{vKt}
    s_add_u32 s45, s45, 1
    s_cmp_lt_u32 s45, 64
    s_cbranch_scc1 {fl}
    v_subrev_u32 v{vKa}, {64*2560}, v{vKa}
    v_subrev_u32 v{vKt}, {64*2560}, v{vKt}
    """)
    setmax(vT3)
    k.e(f"s_branch {main}")
    k.e(f"""
    L_{name}_fin:""")
    k.stamp(4)
    k.e(f"""
    v_rcp_f32 v{vT3}, v{vT3}
    s_nop 0
    """)
    for i in range(12): k.e(f"v_mul_f32 v{O+i}, v{O+i}, v{vT3}")
    for jj in range(3):
        k.e(f"v_cvt_pk_bf16_f32 v{P+2*jj}, v{O+4*jj}, v{O+4*jj+1}\nv_cvt_pk_bf16_f32 v{P+2*jj+1}, v{O+4*jj+2}, v{O+4*jj+3}")
    k.e(f"""
    buffer_store_dwordx2 {vr(P,2)}, v{vSt}, s[12:15], s43 offen
    buffer_store_dwordx2 {vr(P+2,2)}, v{vSt+1}, s[12:15], s43 offen
    s_mov_b32 exec_hi, 0
    buffer_store_dwordx2 {vr(P+4,2)}, v{vSt+2}, s[12:15], s43 offen
    """)
    fin(k)
    k.e(f"L_{name}_end:\ns_endpgm")
    return k.text(NV), 163840

def gen_proj(name, kind, layer):
    k = K(name)
    wo = kind == "wo"
    KD = 640 if wo else 1536
    NST = KD // 128
    WB = 20480; SLOT = WB + 16384; NSLOT = 4
    ND = 9
    NCH = KD // 8
    res_rowmajor = wo and layer == 0
    out_rowmajor = (not wo) and layer == 1
    vLane, vT, vT2, vT3 = 1, 2, 3, 4
    vWd = 8
    vXd = 13
    vWr, vXr = 14, 15
    vRes = 16
    vSt = 26; vRa = 27
    XA, XB = 28, 36
    WA, WBf = 44, 64
    ACC = 84
    vE = 124
    NV = 144
    k.e(f"""
    s_cmp_ge_u32 s2, 256
    s_cbranch_scc1 L_{name}_end""")
    k.stamp(0, True); k.stamp(1)
    k.e(f"""
    s_load_dwordx2 s[20:21], s[0:1], 0      ; x
    s_load_dwordx2 s[22:23], s[0:1], {16 if wo else 48}     ; W
    s_load_dwordx2 s[24:25], s[0:1], 56     ; out
    s_load_dwordx2 s[28:29], s[0:1], 72     ; ws
    s_and_b32 s30, s2, 7
    s_lshr_b32 s31, s2, 3
    v_and_b32 v{vLane}, 63, v0
    v_lshrrev_b32 v{vT}, 6, v0
    s_lshr_b32 s32, s30, 1
    s_lshl_b32 s32, s32, 3
    s_and_b32 s33, s31, 7
    s_add_u32 s32, s32, s33            ; rb64 (0..31)
    s_and_b32 s33, s30, 1
    s_lshl_b32 s33, s33, 2
    s_lshr_b32 s34, s31, 3
    s_add_u32 s33, s33, s34            ; cb (0..7)
    v_readfirstlane_b32 s35, v{vT}
    """)
    for q in range(5):
        k.e(f"""
        v_lshlrev_b32 v{vT2}, 4, v{vLane}
        v_add_u32 v{vT2}, {q*1024}, v{vT2}
        v_mul_u32_u24 v{vT3}, 0x199a, v{vT2}
        v_lshrrev_b32 v{vT3}, 20, v{vT3}
        v_mul_u32_u24 v{vWd+q}, 160, v{vT3}
        v_sub_u32 v{vWd+q}, v{vT2}, v{vWd+q}
        v_lshl_add_u32 v{vT3}, v{vT}, 5, v{vT3}        ; 32w+row
        v_mul_u32_u24 v{vT3}, 1280, v{vT3}
        v_add_u32 v{vWd+q}, v{vWd+q}, v{vT3}
        """)
        if q % 4: k.e(f"v_subrev_u32 v{vWd+q}, {(q%4)*1024}, v{vWd+q}")
    k.e(f"v_lshlrev_b32 v{vXd}, 4, v{vLane}")
    k.e("s_waitcnt lgkmcnt(0)")
    k.srd(4, 28, WS_O if wo else WS_H, SZ_ACT if wo else SZ_H)
    k.srd(8, 22, 0, KD * D * 2)
    if res_rowmajor: k.srd(12, 20, 0, SZ_ACT)
    else: k.srd(12, 28, WS_X2 if wo else WS_X1, SZ_ACT)
    if out_rowmajor: k.srd(16, 24, 0, SZ_ACT)
    else: k.srd(16, 28, WS_X1 if wo else WS_X2, SZ_ACT)
    k.e(f"""
    s_mul_i32 s36, s33, 160
    s_lshr_b32 s42, s35, 1              ; rh
    s_and_b32 s43, s35, 1               ; kh
    s_lshl_b32 s44, s32, 1
    s_add_u32 s44, s44, s42
    s_mul_i32 s37, s44, {NCH*512}
    s_lshl_b32 s45, s43, 12
    s_add_u32 s37, s37, s45
    s_mul_i32 s40, s35, 5120
    s_lshl_b32 s41, s35, 12
    s_add_u32 s41, s41, {WB}
    s_mov_b32 s38, 0
    s_mov_b32 s46, 0
    """)
    def issue_dma():
        k.e(f"s_add_u32 s39, s38, s40\ns_mov_b32 m0, s39\ns_nop 0")
        for q in range(4):
            k.e(f"buffer_load_dwordx4 v{vWd+q}, s[8:11], s36 offen offset:{q*1024} lds")
        k.e(f"s_add_u32 s39, s39, 4096\ns_mov_b32 m0, s39\ns_nop 0")
        k.e(f"buffer_load_dwordx4 v{vWd+4}, s[8:11], s36 offen lds")
        k.e(f"s_add_u32 s39, s38, s41\ns_mov_b32 m0, s39\ns_nop 0")
        for q in range(4):
            k.e(f"buffer_load_dwordx4 v{vXd}, s[4:7], s37 offen offset:{q*1024} lds")
        k.e(f"""
        s_add_u32 s36, s36, {128*1280}
        s_add_u32 s37, s37, 8192
        s_add_u32 s46, s46, 1
        s_cmp_ge_u32 s46, {NST}
        s_cselect_b32 s37, 0x7f000000, s37
        s_cselect_b32 s36, 0x7f000000, s36
        s_add_u32 s38, s38, {SLOT}
        s_cmp_ge_u32 s38, {SLOT*NSLOT}
        s_cselect_b32 s38, 0, s38
        """)
    k.e(f"""
    v_and_b32 v{vT2}, 15, v{vLane}                 ; r
    s_lshl_b32 s45, s43, 4
    v_add_u32 v{vT2}, s45, v{vT2}
    v_lshrrev_b32 v{vT3}, 4, v{vLane}              ; g
    """)
    def fr_addr(d):
        k.e(f"""
        v_lshrrev_b32 v5, 1, v{vT3}
        v_lshlrev_b32 v{d}, 9, v5
        v_and_b32 v5, 1, v{vT3}
        v_lshl_add_u32 v{d}, v5, 3, v{d}
        v_lshl_add_u32 v{d}, v{vT2}, 4, v{d}
        """)
    def rm_addr(d):
        k.e(f"v_mul_u32_u24 v{d}, 1280, v{vT2}\nv_lshl_add_u32 v{d}, v{vT3}, 3, v{d}")
    (rm_addr if res_rowmajor else fr_addr)(vRa)
    (rm_addr if out_rowmajor else fr_addr)(vSt)
    k.e(f"""
    s_mul_i32 s47, s44, {80*512}
    s_mul_i32 s48, s33, {10*512}
    s_add_u32 s47, s47, s48
    s_mul_i32 s48, s44, {32*1280}
    s_mul_i32 s49, s33, 160
    s_add_u32 s48, s48, s49
    """)
    for t in range(5):
        if res_rowmajor: k.e(f"buffer_load_dwordx2 {vr(vRes+2*t,2)}, v{vRa}, s[12:15], s48 offen offset:{32*t}")
        else:
            k.e(f"buffer_load_dwordx2 {vr(vRes+2*t,2)}, v{vRa}, s[12:15], s47 offen offset:{1024*t}" if t < 4 else
                f"s_add_u32 s49, s47, 4096\nbuffer_load_dwordx2 {vr(vRes+2*t,2)}, v{vRa}, s[12:15], s49 offen")
    for s in range(NSLOT): issue_dma()
    k.e(f"""
    v_lshrrev_b32 v5, 2, v{vLane}                  ; 4g+row
    s_lshl_b32 s45, s43, 5
    v_add_u32 v5, s45, v5
    v_mul_u32_u24 v5, 160, v5
    v_and_b32 v6, 3, v{vLane}
    v_lshl_add_u32 v{vWr}, v6, 3, v5
    v_and_b32 v5, 15, v{vLane}
    v_lshlrev_b32 v5, 4, v5
    v_lshl_add_u32 v5, v{vT3}, 9, v5               ; g*512 + r*16
    s_lshl_b32 s45, s42, 13
    s_lshl_b32 s49, s43, 11
    s_add_u32 s45, s45, s49
    s_add_u32 s45, s45, {WB}
    v_add_u32 v{vXr}, s45, v5
    """)
    for i in range(40): k.e(f"v_mov_b32 v{ACC+i}, 0")
    def reads(jj, X, W):
        if 'noreads' in XP: return
        for u in range(2):
            k.e(f"ds_read_b128 {vr(X+4*u,4)}, v{vXr} offset:{jj*4096 + u*256}")
        for t in range(5):
            for i in range(2):
                k.e(f"ds_read_b64_tr_b16 {vr(W+4*t+2*i,2)}, v{vWr} offset:{(64*jj+16*i)*160 + 32*t}")
    def compute(X, W):
        for t in range(5):
            for u in range(2):
                a = vr(ACC + 20 * u + 4 * t, 4)
                k.e(f"v_mfma_f32_16x16x32_bf16 {a}, {vr(W+4*t,4)}, {vr(X+4*u,4)}, {a}")
    loop = k.lab("loop")
    k.e(f"s_mov_b32 s50, 0\ns_mov_b32 s51, {NST}\ns_mov_b32 s60, {SLOT}")
    k.stamp(2); k.e(f"s_waitcnt vmcnt({ND*(NSLOT-1)})\ns_barrier"); k.stamp(3)
    reads(0, XA, WA)
    k.e(f"{loop}:")
    reads(1, XB, WBf)
    k.e("s_waitcnt lgkmcnt(12)")
    compute(XA, WA)
    k.e(f"s_waitcnt vmcnt({ND*(NSLOT-2)}) lgkmcnt(0)\ns_barrier")
    k.e(f"""
    s_add_u32 s50, s50, {SLOT}
    s_cmp_ge_u32 s50, {SLOT*NSLOT}
    s_cselect_b32 s52, {-SLOT*(NSLOT-1) & 0xffffffff:#x}, s60
    s_cselect_b32 s50, 0, s50
    v_add_u32 v{vWr}, s52, v{vWr}
    v_add_u32 v{vXr}, s52, v{vXr}
    """)
    reads(0, XA, WA)
    if 'nodma' not in XP: issue_dma()
    compute(XB, WBf)
    k.e(f"s_sub_u32 s51, s51, 1\ns_cmp_lg_u32 s51, 0\ns_cbranch_scc1 {loop}")
    k.e("s_waitcnt vmcnt(0) lgkmcnt(0)\ns_barrier"); k.stamp(4)
    k.e(f"""
    v_lshlrev_b32 v5, 4, v{vLane}
    s_mul_i32 s45, s35, 5120
    v_add_u32 v6, s45, v5
    s_xor_b32 s45, s35, 1
    s_mul_i32 s45, s45, 5120
    v_add_u32 v5, s45, v5
    s_nop 7
    """)
    l1 = k.lab("kh1"); lj = k.lab("j")
    k.e(f"s_cmp_eq_u32 s43, 0\ns_cbranch_scc0 {l1}")
    for t in range(5): k.e(f"ds_write_b128 v6, {vr(ACC+20+4*t,4)} offset:{1024*t}")
    k.e(f"s_branch {lj}\n{l1}:")
    for t in range(5): k.e(f"ds_write_b128 v6, {vr(ACC+4*t,4)} offset:{1024*t}")
    k.e("s_waitcnt lgkmcnt(0)")
    for i in range(20): k.e(f"v_mov_b32 v{ACC+i}, v{ACC+20+i}")
    k.e(f"{lj}:\ns_waitcnt lgkmcnt(0)\ns_barrier")
    for t in range(5): k.e(f"ds_read_b128 {vr(vE+4*t,4)}, v5 offset:{1024*t}")
    k.e("s_waitcnt lgkmcnt(0)")
    for t in range(5):
        a = ACC + 4 * t; e = vE + 4 * t; r = vRes + 2 * t
        k.e(f"""
        v_pk_add_f32 {vr(a,2)}, {vr(a,2)}, {vr(e,2)}
        v_pk_add_f32 {vr(a+2,2)}, {vr(a+2,2)}, {vr(e+2,2)}
        v_lshlrev_b32 v{e}, 16, v{r}
        v_and_b32 v{e+1}, 0xffff0000, v{r}
        v_lshlrev_b32 v{e+2}, 16, v{r+1}
        v_and_b32 v{e+3}, 0xffff0000, v{r+1}
        v_pk_add_f32 {vr(a,2)}, {vr(a,2)}, {vr(e,2)}
        v_pk_add_f32 {vr(a+2,2)}, {vr(a+2,2)}, {vr(e+2,2)}
        v_cvt_pk_bf16_f32 v{a}, v{a}, v{a+1}
        v_cvt_pk_bf16_f32 v{a+1}, v{a+2}, v{a+3}
        """)
        if out_rowmajor: k.e(f"buffer_store_dwordx2 {vr(a,2)}, v{vSt}, s[16:19], s48 offen offset:{32*t}")
        else:
            k.e(f"buffer_store_dwordx2 {vr(a,2)}, v{vSt}, s[16:19], s47 offen offset:{1024*t}" if t < 4 else
                f"s_add_u32 s49, s47, 4096\nbuffer_store_dwordx2 {vr(a,2)}, v{vSt}, s[16:19], s49 offen")
    fin(k)
    k.e(f"L_{name}_end:\ns_endpgm")
    return k.text(NV), SLOT * NSLOT

def main(out):
    hdr = open("interleave_layers__mha_block__glu_gated_reglu__prompt.s.ref").read().split("; Override")[0]
    ks = {}
    ks["qkv0_kernel"] = (gen_lngemm("qkv0_kernel", "qkv", 0), 256)
    ks["qkv1_kernel"] = (gen_lngemm("qkv1_kernel", "qkv", 1), 256)
    ks["attn_kernel"] = (gen_attn("attn_kernel"), 512)
    ks["wo0_kernel"] = (gen_proj("wo0_kernel", "wo", 0), 256)
    ks["wo1_kernel"] = (gen_proj("wo1_kernel", "wo", 1), 256)
    ks["gu_kernel"] = (gen_lngemm("gu_kernel", "gu", 0), 256)
    ks["dn0_kernel"] = (gen_proj("dn0_kernel", "dn", 0), 256)
    ks["dn1_kernel"] = (gen_proj("dn1_kernel", "dn", 1), 256)
    order = ["qkv0_kernel", "attn_kernel", "wo0_kernel", "gu_kernel", "dn0_kernel", "qkv1_kernel", "attn_kernel", "wo1_kernel", "gu_kernel", "dn1_kernel"]
    txt = hdr
    for n in order:
        (t, lds), blk = ks[n]
        txt += f"; @launch kernel={n} grid=(256,1,1) block=({blk},1,1) lds={lds}\n"
    txt += '.amdgcn_target "amdgcn-amd-amdhsa--gfx950"\n'
    for n, ((t, lds), blk) in ks.items():
        txt += t
    open(out, "w").write(txt)

if __name__ == "__main__":
    if len(sys.argv) > 2 and sys.argv[2] == "stamps": STAMPS = True
    main(sys.argv[1] if len(sys.argv) > 1 else "interleave_layers__mha_block__glu_gated_reglu__prompt.s")
```
